```python
import torch

def _softmax(x, axis=-1):
    return torch.softmax(x, dim=axis)
def _gelu(x):
    return torch.nn.functional.gelu(x, approximate="tanh")
def _silu(x):
    return torch.nn.functional.silu(x)
def _sigmoid(x):
    return torch.sigmoid(x)
def _layernorm(x, axis=-1, eps=1e-5):
    m = x.mean(dim=axis, keepdim=True)
    v = x.var(dim=axis, keepdim=True, unbiased=False)
    return (x - m) / torch.sqrt(v + eps)
def _scatter_add(tgt, idx, src, axis=0):
    return tgt.clone().index_add_(axis, idx, src)
def _segment_sum(src, seg, n):
    out = torch.zeros((n,) + src.shape[1:], dtype=src.dtype)
    return out.index_add_(0, seg, src)
def _pad(x, pw):
    flat = tuple(v for pair in reversed(pw) for v in pair)
    return torch.nn.functional.pad(x, flat)

kernel_name = 'sequential_preLN__sliding_block_cached__mixer_token_mlp__decode'

def setup_inputs():

    _w = (lambda a: (lambda t: t.to(torch.bfloat16) if t.is_floating_point() else t)(torch.as_tensor(a)))
    def _A_setup():
        B, Sq, D = 4, 1, 448
        Hq, Hkv, Sk, Dh = 16, 8, 8192, 256
        assert Hq % Hkv == 0, (Hq, Hkv)
        return {
            "x": _w((lambda *s: torch.randn(*s, dtype=torch.bfloat16) * 0.05)(B, Sq, D)),
            "k_cache": _w((lambda *s: torch.randn(*s, dtype=torch.bfloat16) * 1.6)(B, Hkv, Sk, Dh)),
            "v_cache": _w((lambda *s: torch.randn(*s, dtype=torch.bfloat16) * 0.4)(B, Hkv, Sk, Dh)),
            "wq": _w((lambda *s: torch.randn(*s, dtype=torch.bfloat16) * 1.6)(D, Hq * Dh) * (D ** -0.5)),
            "wo": _w((lambda *s: torch.randn(*s, dtype=torch.bfloat16) * 0.4)(Hq * Dh, D) * ((Hq * Dh) ** -0.5)),
        }
    _A_in = _A_setup()

    def _B_setup():
        B, S, D, F = 4, 1, 448, 1792
        return {
            "x": _w((lambda *s: torch.randn(*s, dtype=torch.bfloat16) * 0.05)(B, S, D)),
            "w1": _w((lambda *s: torch.randn(*s, dtype=torch.bfloat16) * 1.6)(S, F) * (S ** -0.5)),
            "b1": _w((lambda *s: torch.randn(*s, dtype=torch.bfloat16) * 1.6)(F) * 0.02),
            "w2": _w((lambda *s: torch.randn(*s, dtype=torch.bfloat16) * 0.1)(F, S) * (F ** -0.5)),
            "b2": _w((lambda *s: torch.randn(*s, dtype=torch.bfloat16) * 0.1)(S) * 0.02),
        }
    _B_in = _B_setup()

    return {
        "A_x": _A_in["x"],
        "A_k_cache": _A_in["k_cache"],
        "A_v_cache": _A_in["v_cache"],
        "A_wq": _A_in["wq"],
        "A_wo": _A_in["wo"],
        "B_x": _B_in["x"],
        "B_w1": _B_in["w1"],
        "B_b1": _B_in["b1"],
        "B_w2": _B_in["w2"],
        "B_b2": _B_in["b2"],
    }

def reference(A_x, A_k_cache, A_v_cache, A_wq, A_wo, B_x, B_w1, B_b1, B_w2, B_b2):
    def _A_ref(x, k_cache, v_cache, wq, wo):
        B, Sq, D = x.shape
        Hq, Dh = 16, 256
        Hkv, Sk = k_cache.shape[1], k_cache.shape[2]
        W = min(4096, max(256, Sk // 4))
        rep = Hq // Hkv
        q = (lambda x, *d: x.permute(*d))((x @ wq).reshape(B, Sq, Hq, Dh), 0, 2, 1, 3)
        k = (lambda x, n, axis: torch.repeat_interleave(x, n, dim=axis))(k_cache[:, :, Sk - W:, :], rep, axis=1)
        v = (lambda x, n, axis: torch.repeat_interleave(x, n, dim=axis))(v_cache[:, :, Sk - W:, :], rep, axis=1)
        scores = torch.einsum("bhqd,bhkd->bhqk", q, k) * (Dh ** -0.5)
        p = _softmax(scores, axis=-1)
        o = torch.einsum("bhqk,bhkd->bhqd", p, v)
        return (lambda x, *d: x.permute(*d))(o, 0, 2, 1, 3).reshape(B, Sq, Hq * Dh) @ wo

    def _B_ref(x, w1, b1, w2, b2):
        B, S, D = x.shape
        h = _layernorm(x, axis=-1)
        u = torch.einsum("bsd,sf->bdf", h, w1) + b1
        u = _gelu(u)
        y = torch.einsum("bdf,fs->bds", u, w2) + b2
        return (lambda x, *d: x.permute(*d))(y, 0, 2, 1)

    x = A_x
    h = x + _A_ref(_layernorm(x, axis=-1), A_k_cache, A_v_cache, A_wq, A_wo)
    h2 = h + _B_ref(_layernorm(h, axis=-1), B_w1, B_b1, B_w2, B_b2)
    return h2
```

```python
import sys, math
NAME = "sequential_preLN__sliding_block_cached__mixer_token_mlp__decode_kernel"

L_QFLAG, L_SCNT = 0x0, 0x4
L_B2 = 0x8
L_M, L_L, L_F = 0x40, 0x80, 0xC0
L_Q = 0x100
L_OBF = 0x500
L_H = 0x900
L_XN = 0x1000
L_PART = 0x1E00
L_PAR = 0x2000
L_WQ = 0x5000
L_XROW = 0x8800
L_OBUF = 0x9000
L_WO = 0xD000
L_END = 0x1D000
W_Q = 0x0
W_ST = 0x8000
W_O = 0x10000
W_OUT = 0x100000
W_STAMP = 0x10000000
SPIN = 200000

CSC = math.log2(math.e) / 16.0
K0 = -2.0 * math.log2(math.e) * math.sqrt(2.0 / math.pi)
K1 = K0 * 0.044715
import struct
def fbits(x): return "0x%08x" % struct.unpack("<I", struct.pack("<f", x))[0]

class G:
    def __init__(s, **o):
        s.L = []
        s.o = dict(kvflags="nt", wflags="", map_="g", stamps=False, rot=True, sl_bar=8, sl_q=6, sl1=4, sl2=4, first1=0, first2=0)
        s.o.update(o)
        s.uid = 0
    def e(s, t):
        for l in t.split("\n"):
            l = l.strip()
            if l: s.L.append(("" if l.endswith(":") else "    ") + l)
    def lab(s, p):
        s.uid += 1
        return f"L_{p}_{s.uid}"
    def stamp(s, i):
        if s.o["stamps"]:
            s.e(f"s_memrealtime s[{64+2*i}:{65+2*i}]")
    def write_stamps(s, idxs):
        if not s.o["stamps"]: return
        s.e("s_waitcnt lgkmcnt(0)\ns_mov_b64 exec, 1\nv_mov_b32 v2, 0")
        s.e(f"s_lshl_b32 s63, s2, 7\ns_add_u32 s63, s63, {W_STAMP}")
        for i in idxs:
            r = 64 + 2 * i
            s.e(f"v_mov_b32 v4, s{r}\nv_mov_b32 v5, s{r+1}\nbuffer_store_dwordx2 v[4:5], v2, s[48:51], s63 offen offset:{8*i}\ns_nop 1")
    def srd(s, d, b, n):
        s.e(f"s_mov_b32 s{d}, s{b}\ns_mov_b32 s{d+1}, s{b+1}\ns_mov_b32 s{d+2}, {n}\ns_mov_b32 s{d+3}, 0x20000")
    def spin_head(s, p):
        l = s.lab(p); s.e(f"s_mov_b32 s60, 0\n{l}:"); return l
    def spin_tail(s, l, cond):
        o = s.lab("out")
        s.e(f"s_add_u32 s60, s60, 1\ns_cmp_gt_u32 s60, {SPIN}\ns_cbranch_scc1 {o}")
        s.e(cond.format(l))
        s.e(f"{o}:")
    def red8(s, op, r):
        for c in ("quad_perm:[1,0,3,2]", "quad_perm:[2,3,0,1]", "row_half_mirror"):
            s.e(f"s_nop 1\n{op}_dpp v{r}, v{r}, v{r} {c} row_mask:0xf bank_mask:0xf")
    def red16(s, op, regs):
        for c in ("quad_perm:[1,0,3,2]", "quad_perm:[2,3,0,1]", "row_half_mirror", "row_mirror"):
            s.e("s_nop 1" if len(regs) == 1 else "s_nop 0")
            for r in regs:
                s.e(f"{op}_dpp v{r}, v{r}, v{r} {c} row_mask:0xf bank_mask:0xf")
    def xrow(s, op, r, t):
        for sw in ("v_permlane16_swap_b32", "v_permlane32_swap_b32"):
            s.e(f"v_mov_b32 v{t}, v{r}\ns_nop 1\n{sw} v{r}, v{t}\ns_nop 0\n{op} v{r}, v{r}, v{t}")
    def rscatter(s, x):
        s.e(f"s_nop 1\nv_permlane32_swap_b32 v{x}, v{x+1}\nv_permlane32_swap_b32 v{x+2}, v{x+3}\ns_nop 0")
        s.e(f"v_add_f32 v{x}, v{x}, v{x+1}\nv_add_f32 v{x+2}, v{x+2}, v{x+3}\ns_nop 1")
        s.e(f"v_permlane16_swap_b32 v{x}, v{x+2}\ns_nop 0\nv_add_f32 v{x}, v{x}, v{x+2}")
    def bfround(s, r):
        s.e(f"v_cvt_pk_bf16_f32 v{r}, v{r}, v{r}\nv_and_b32 v{r}, 0xffff0000, v{r}")

    def gen(s):
        o, e = s.o, s.e
        s.L.append(f"; @launch grid=(256,1,1) block=(768,1,1) lds={L_END}")
        s.L.append('.amdgcn_target "amdgcn-amd-amdhsa--gfx950"\n.text')
        s.L.append(f".globl {NAME}\n.p2align 8\n.type {NAME},@function\n{NAME}:")
        e("s_cmp_ge_u32 s2, 256\ns_cbranch_scc1 L_end")
        s.stamp(0)
        e("s_load_dwordx16 s[4:19], s[0:1], 0\ns_load_dwordx8 s[20:27], s[0:1], 64\ns_load_dwordx2 s[28:29], s[0:1], 96")
        e("s_setprio 3")
        e("v_lshrrev_b32 v2, 6, v0\nv_and_b32 v1, 63, v0\ns_nop 0\nv_readfirstlane_b32 s30, v2")
        if o["map_"] == "g":
            e("s_and_b32 s31, s2, 7\ns_lshr_b32 s33, s2, 3\ns_lshr_b32 s32, s33, 3\ns_and_b32 s33, s33, 7")
        else:
            e("s_and_b32 s33, s2, 7\ns_lshr_b32 s31, s2, 3\ns_lshr_b32 s32, s31, 3\ns_and_b32 s31, s31, 7")
        e("s_lshl_b32 s34, s32, 3\ns_add_u32 s34, s34, s31\ns_lshl_b32 s35, s34, 3\ns_add_u32 s35, s35, s33")
        e("s_cmp_ge_u32 s30, 4\ns_cbranch_scc1 L_stream\ns_cmp_eq_u32 s30, 0\ns_cbranch_scc1 L_qwave")
        s.prefetch()
        s.qwave()
        s.stream()
        e("L_end:\ns_endpgm")
        s.L.append(f""".section .rodata,"a"
.p2align 6
.amdhsa_kernel {NAME}
  .amdhsa_next_free_vgpr 168
  .amdhsa_next_free_sgpr 96
  .amdhsa_accum_offset 168
  .amdhsa_group_segment_fixed_size 0
  .amdhsa_kernarg_size 104
  .amdhsa_user_sgpr_count 2
  .amdhsa_user_sgpr_kernarg_segment_ptr 1
  .amdhsa_system_sgpr_workgroup_id_x 1
.end_amdhsa_kernel""")
        return "\n".join(s.L) + "\n"

    def prefetch(s):
        o, e = s.o, s.e
        wf = o["wflags"]
        e("s_setprio 1")
        e("v_lshrrev_b32 v2, 3, v1\nv_mul_u32_u24 v3, 896, v2\nv_bfe_u32 v4, v1, 4, 1\nv_and_b32 v5, 7, v1\nv_sub_u32 v5, v5, v4")
        for k in range(4):
            par, kh = k & 1, k >> 1
            e(f"v_subrev_u32 v6, {2*par+4*kh}, v5\nv_and_b32 v6, 7, v6\nv_cmp_ne_u32 s[{40+2*k}:{41+2*k}], 7, v6\nv_lshl_add_u32 v{10+k}, v6, 4, v3")
        e("v_lshlrev_b32 v14, 4, v1")
        e("s_waitcnt lgkmcnt(0)")
        s.srd(36, 12, 4096 * 896)
        e("s_mul_i32 s52, s31, 458752\ns_mul_i32 s53, s33, 112\ns_add_u32 s52, s52, s53")
        e("s_barrier")
        e("s_cmp_eq_u32 s30, 2\ns_cbranch_scc1 L_pf2\ns_cmp_eq_u32 s30, 3\ns_cbranch_scc1 L_pf3")
        for pw in range(3):
            if pw: e(f"L_pf{pw+1}:")
            s.srd(56, (16, 18, 20)[pw], 3584)
            for i in range(4):
                e(f"s_mov_b32 m0, {L_PAR + pw*4096 + i*1024}\ns_movk_i32 s53, {i*1024}\nbuffer_load_dwordx4 v14, s[56:59], s53 offen lds")
            if pw == 0:
                s.srd(56, 4, 3584)
                e(f"s_mov_b32 m0, {L_XROW}\ns_mul_i32 s53, s32, 896\nbuffer_load_dwordx4 v14, s[56:59], s53 offen lds")
            if pw == 1:
                s.srd(56, 22, 2)
                e("v_mov_b32 v15, 0\nbuffer_load_ushort v16, v15, s[56:59], 0 offen")
            for ch in range(pw, 64, 3):
                k = (ch & 1) + 2 * (ch >> 5)
                e(f"s_mov_b32 m0, {L_WO + ch*1024}\ns_add_u32 s53, s52, {ch*8*896}\ns_mov_b64 exec, s[{40+2*k}:{41+2*k}]")
                e(f"buffer_load_dwordx4 v{10+k}, s[36:39], s53 offen {wf} lds")
            e("s_mov_b64 exec, -1\ns_waitcnt vmcnt(0)")
            if pw == 1:
                e(f"v_lshlrev_b32 v16, 16, v16\nds_write_b32 v15, v16 offset:{L_B2}\ns_waitcnt lgkmcnt(0)")
            e("s_barrier\ns_endpgm")

    def qwave(s):
        o, e = s.o, s.e
        wf = o["wflags"]
        e("L_qwave:")
        e(f"v_mov_b32 v2, 0\nv_mov_b32 v3, 0\nds_write_b64 v2, v[2:3] offset:{L_QFLAG}")
        e("v_lshrrev_b32 v4, 4, v1\nv_and_b32 v5, 15, v1\nv_mul_u32_u24 v4, 896, v4\nv_mul_u32_u24 v5, 56, v5\nv_add_u32 v6, v4, v5")
        e("v_lshrrev_b32 v7, 1, v1\nv_lshlrev_b32 v7, 13, v7\nv_and_b32 v8, 1, v1\nv_lshl_add_u32 v7, v8, 4, v7")
        e("v_lshlrev_b32 v9, 4, v1")
        e("v_lshrrev_b32 v10, 4, v1\nv_lshlrev_b32 v10, 14, v10\nv_and_b32 v11, 15, v1\nv_lshl_add_u32 v10, v11, 4, v10")
        e("v_mov_b32 v12, -1\nv_mov_b32 v13, -1\nv_mov_b32 v14, -1\nv_mov_b32 v15, -1")
        e("s_waitcnt lgkmcnt(0)")
        s.srd(36, 4, 3584)
        s.srd(40, 10, 448 * 8192)
        s.srd(44, 26, 256)
        s.srd(48, 28, 0x20000000)
        e("buffer_load_dwordx4 v[16:19], v6, s[36:39], 0 offen\nbuffer_load_dwordx4 v[20:23], v6, s[36:39], 0 offen offset:16")
        e("buffer_load_dwordx4 v[24:27], v6, s[36:39], 0 offen offset:32\nbuffer_load_dwordx2 v[28:29], v6, s[36:39], 0 offen offset:48")
        e("s_lshl_b32 s54, s33, 2\ns_add_u32 s54, s54, s32\ns_lshl_b32 s52, s31, 10\ns_lshl_b32 s53, s54, 5\ns_add_u32 s52, s52, s53")
        for m in range(14):
            e(f"s_mov_b32 m0, {L_WQ + m*1024}\ns_add_u32 s53, s52, {m*32*8192}\nbuffer_load_dwordx4 v7, s[40:43], s53 offen {wf} lds")
        e(f"s_lshl_b32 s55, s31, 5\ns_add_u32 s55, s55, s54\ns_lshl_b32 s55, s55, 7")
        e(f"s_lshl_b32 s56, s34, 7\ns_lshl_b32 s53, s33, 4\ns_add_u32 s56, s56, s53\ns_add_u32 s56, s56, {W_ST}")
        e(f"s_lshl_b32 s57, s35, 11\ns_add_u32 s57, s57, {W_O}")
        e(f"s_lshl_b32 s58, s32, 17\ns_and_b32 s53, s35, 63\ns_lshl_b32 s53, s53, 8\ns_add_u32 s58, s58, s53\ns_add_u32 s58, s58, {W_OUT}\ns_add_u32 s59, s58, 65536")
        e("buffer_store_dwordx4 v[12:15], v9, s[48:51], s57 offen sc1\nbuffer_store_dwordx4 v[12:15], v9, s[48:51], s57 offen offset:1024 sc1")
        e("buffer_store_dwordx4 v[12:15], v10, s[48:51], s58 offen sc1\nbuffer_store_dwordx4 v[12:15], v10, s[48:51], s59 offen sc1")
        e("s_mov_b64 exec, 0xff\nbuffer_store_dwordx4 v[12:15], v9, s[48:51], s55 offen sc1")
        e("s_mov_b64 exec, 1\nbuffer_store_dwordx4 v[12:15], v9, s[48:51], s56 offen sc1\ns_mov_b64 exec, -1")
        e("s_barrier")
        e("s_waitcnt vmcnt(20)")
        s.stamp(1)
        for k in range(14):
            e(f"v_lshlrev_b32 v{32+2*k}, 16, v{16+k}\nv_and_b32 v{33+2*k}, 0xffff0000, v{16+k}")
        e("v_mov_b32_dpp v60, v32 row_newbcast:0 row_mask:0xf bank_mask:0xf")
        e("v_mov_b32 v62, 0\nv_mov_b32 v63, 0\nv_mov_b32 v64, 0\nv_mov_b32 v65, 0")
        for k in range(14):
            e(f"v_pk_add_f32 v[66:67], v[{32+2*k}:{33+2*k}], v[60:61] op_sel_hi:[1,0] neg_lo:[0,1] neg_hi:[0,1]")
            e(f"v_pk_add_f32 v[62:63], v[62:63], v[66:67]\nv_pk_fma_f32 v[64:65], v[66:67], v[66:67], v[64:65]")
        e("v_add_f32 v62, v62, v63\nv_add_f32 v64, v64, v65")
        s.red16("v_add_f32", [62, 64])
        e(f"s_mov_b32 s61, {fbits(1.0/448)}\ns_mov_b32 s62, {fbits(1e-5)}")
        e("v_mul_f32 v62, s61, v62\nv_mul_f32 v64, s61, v64\nv_fma_f32 v64, -v62, v62, v64\nv_max_f32 v64, 0, v64\nv_add_f32 v62, v60, v62")
        s.bfround(62); s.bfround(64)
        e("v_add_f32 v64, s62, v64"); s.bfround(64)
        e("v_sqrt_f32 v64, v64\ns_nop 0"); s.bfround(64)
        e("v_rcp_f32 v64, v64")
        for k in range(14):
            a = 32 + 2 * k
            e(f"v_pk_add_f32 v[{a}:{a+1}], v[{a}:{a+1}], v[62:63] op_sel_hi:[1,0] neg_lo:[0,1] neg_hi:[0,1]")
            e(f"v_cvt_pk_bf16_f32 v66, v{a}, v{a+1}\nv_lshlrev_b32 v{a}, 16, v66\nv_and_b32 v{a+1}, 0xffff0000, v66")
            e(f"v_pk_mul_f32 v[{a}:{a+1}], v[{a}:{a+1}], v[64:65] op_sel_hi:[1,0]")
            e(f"v_cvt_pk_bf16_f32 v{16+k}, v{a}, v{a+1}")
        for k in range(7):
            e(f"ds_write_b64 v6, v[{16+2*k}:{17+2*k}] offset:{L_XN + 8*k}")
        e("v_and_b32 v2, 3, v1\nv_mul_u32_u24 v2, 896, v2\nv_lshrrev_b32 v3, 4, v1\nv_lshl_add_u32 v2, v3, 4, v2")
        e("v_and_b32 v4, 15, v1\nv_lshlrev_b32 v4, 3, v4\nv_lshl_add_u32 v4, v3, 8, v4")
        e("s_waitcnt lgkmcnt(0)")
        for m in range(14):
            e(f"ds_read_b128 v[{32+4*m}:{35+4*m}], v2 offset:{L_XN + 64*m}")
        e("s_waitcnt vmcnt(0)")
        s.stamp(2)
        e("s_lshr_b32 s53, s2, 3\ns_and_b32 s53, s53, 3\ns_lshl_b32 s53, s53, 6\nv_mov_b32 v6, 1\nv_mov_b32 v7, 0")
        e("s_mov_b64 exec, 1\nbuffer_atomic_add v6, v7, s[44:47], s53 offen sc1\ns_mov_b64 exec, -1")
        for m in range(14):
            e(f"ds_read_b64_tr_b16 v[{96+4*m}:{97+4*m}], v4 offset:{L_WQ + 1024*m}\nds_read_b64_tr_b16 v[{98+4*m}:{99+4*m}], v4 offset:{L_WQ + 1024*m + 128}")
        e("s_waitcnt lgkmcnt(0)")
        for m in range(14):
            e(f"v_mfma_f32_16x16x32_bf16 v[16:19], v[{96+4*m}:{99+4*m}], v[{32+4*m}:{35+4*m}], {'0' if m == 0 else 'v[16:19]'}")
        e("v_and_b32 v2, 3, v1\nv_lshlrev_b32 v2, 5, v2\nv_lshl_add_u32 v2, v3, 3, v2\ns_nop 7")
        e("v_cvt_pk_bf16_f32 v20, v16, v17\nv_cvt_pk_bf16_f32 v21, v18, v19\nv_min_u32 v20, -2, v20\nv_min_u32 v21, -2, v21")
        e("s_mov_b32 exec_lo, 0x000f000f\ns_mov_b32 exec_hi, 0x000f000f\nbuffer_store_dwordx2 v[20:21], v2, s[48:51], s55 offen sc1\ns_mov_b64 exec, -1")
        s.stamp(3)
        e("v_and_b32 v2, 3, v1\nv_lshlrev_b32 v2, 6, v2")
        l = s.spin_head("bar")
        e(f"s_sleep {o['sl_bar']}\nbuffer_load_dword v6, v2, s[44:47], 0 offen sc1\ns_waitcnt vmcnt(0)\nv_cmp_ne_u32 vcc, 64, v6")
        s.spin_tail(l, "s_cbranch_vccnz {}")
        s.stamp(4)
        e("v_lshrrev_b32 v2, 1, v1\nv_lshlrev_b32 v2, 7, v2\nv_and_b32 v3, 1, v1\nv_lshl_add_u32 v2, v3, 4, v2")
        e("s_lshl_b32 s53, s31, 12\ns_lshl_b32 s54, s32, 5\ns_add_u32 s53, s53, s54")
        first = s.lab("qf")
        e(f"s_mov_b32 s60, 0\ns_branch {first}")
        l = s.lab("q"); e(f"{l}:\ns_sleep {o['sl_q']}\n{first}:")
        e("buffer_load_dwordx4 v[16:19], v2, s[48:51], s53 offen sc1\ns_waitcnt vmcnt(0)")
        e("v_max3_u32 v6, v16, v17, v18\nv_max_u32 v6, v6, v19\nv_cmp_eq_u32 vcc, -1, v6")
        s.spin_tail(l, "s_cbranch_vccnz {}")
        e(f"ds_write_b128 v9, v[16:19] offset:{L_Q}\nv_mov_b32 v6, 1\ns_waitcnt lgkmcnt(0)\nds_write_b32 v7, v6 offset:{L_QFLAG}")
        s.stamp(5)
        l = s.spin_head("sc")
        e(f"s_sleep 2\nds_read_b32 v6, v7 offset:{L_SCNT}\ns_waitcnt lgkmcnt(0)\nv_cmp_ne_u32 vcc, 8, v6")
        s.spin_tail(l, "s_cbranch_vccnz {}")
        s.stamp(6)
        e(f"v_and_b32 v2, 15, v1\nv_lshlrev_b32 v2, 2, v2\nds_read_b32 v16, v2 offset:{L_M}\nds_read_b32 v17, v2 offset:{L_L}\ns_waitcnt lgkmcnt(0)")
        e("v_mov_b32 v18, v16")
        s.red8("v_max_f32", 18)
        e("v_sub_f32 v19, v16, v18\nv_exp_f32 v19, v19\ns_nop 0\nv_mul_f32 v19, v19, v17")
        s.red8("v_add_f32", 19)
        e("v_min_u32 v18, -2, v18\nv_min_u32 v19, -2, v19\nv_and_b32 v3, 8, v1")
        e("s_mov_b64 exec, 0x101\nbuffer_store_dwordx2 v[18:19], v3, s[48:51], s56 offen sc1\ns_mov_b64 exec, -1")
        e(f"v_and_b32 v4, 7, v1\nv_lshl_add_u32 v3, v4, 4, v3\ns_lshl_b32 s53, s34, 7\ns_add_u32 s53, s53, {W_ST}")
        e("s_mov_b64 exec, 0xffff")
        l = s.spin_head("st")
        e(f"s_sleep {o['sl_q']}\nbuffer_load_dwordx2 v[20:21], v3, s[48:51], s53 offen sc1\ns_waitcnt vmcnt(0)")
        e("v_max_u32 v6, v20, v21\nv_cmp_eq_u32 vcc, -1, v6")
        s.spin_tail(l, "s_cbranch_vccnz {}")
        e("v_mov_b32 v22, v20")
        s.red8("v_max_f32", 22)
        e("v_sub_f32 v20, v20, v22\nv_exp_f32 v20, v20\nv_sub_f32 v16, v16, v22\nv_mul_f32 v20, v20, v21\nv_exp_f32 v16, v16")
        s.red8("v_add_f32", 20)
        e(f"v_rcp_f32 v20, v20\ns_nop 0\nv_mul_f32 v16, v16, v20\nds_write_b32 v2, v16 offset:{L_F}\ns_waitcnt lgkmcnt(0)\ns_mov_b64 exec, -1")
        s.stamp(7)
        e("s_barrier")
        s.write_stamps([1, 2, 3, 4, 5, 6, 7])
        e("s_endpgm")

    def issue(s, which, lo, hi):
        srd, vo, base = (("s[36:39]", "v14", 40), ("s[40:43]", "v15", 104))[which]
        for i in range(lo, hi):
            kg, half = i >> 1, i & 1
            r = base + 4 * i
            s.e(f"buffer_load_dwordx4 v[{r}:{r+3}], {vo}, {srd}, s{44 + (kg >> 1)} offen offset:{(kg & 1)*2048 + half*256} {s.o['kvflags']}")

    def stream(s):
        o, e = s.o, s.e
        e("L_stream:")
        e("s_sub_u32 s30, s30, 4")
        if o["rot"]:
            e("s_lshr_b32 s52, s2, 3\ns_add_u32 s52, s52, s30\ns_and_b32 s52, s52, 7\ns_lshr_b32 s54, s2, 6")
        else:
            e("s_mov_b32 s52, s30\ns_mov_b32 s54, 0")
        e("s_lshl_b32 s52, s52, 14\ns_lshl_b32 s53, s34, 22\ns_add_u32 s52, s52, s53\ns_lshl_b32 s53, s33, 17\ns_add_u32 s52, s52, s53")
        e(f"s_add_u32 s52, s52, {6144*512}")
        for i in range(4):
            e(f"s_add_u32 s53, s54, {i}\ns_and_b32 s53, s53, 3\ns_lshl_b32 s53, s53, 12\ns_add_u32 s{44+i}, s52, s53")
        e("v_lshrrev_b32 v2, 4, v1\nv_and_b32 v3, 3, v1\nv_lshlrev_b32 v3, 4, v3\nv_lshl_add_u32 v3, v2, 6, v3\nv_bfe_u32 v4, v1, 2, 2\nv_lshl_add_u32 v14, v4, 9, v3")
        e("v_and_b32 v5, 15, v1\nv_lshlrev_b32 v5, 4, v5\nv_lshl_add_u32 v15, v2, 9, v5")
        e("s_waitcnt lgkmcnt(0)")
        s.srd(36, 6, 0x8000000)
        s.srd(40, 8, 0x8000000)
        s.issue(0, 0, 4)
        e("s_barrier")
        s.issue(0, 4, 16)
        s.srd(48, 28, 0x20000000)
        e("s_cmp_ge_u32 s30, 4\ns_cbranch_scc1 L_late1\ns_setprio 2")
        s.issue(1, 0, 16)
        e("s_setprio 3\nL_late1:")
        e("v_bfe_u32 v4, v1, 3, 1\nv_lshl_add_u32 v32, v4, 9, v3")
        e("v_and_b32 v4, 1, v1\nv_lshlrev_b32 v4, 4, v4\nv_mov_b32 v5, 0xffff\nv_lshlrev_b32 v5, v4, v5\nv_bfe_u32 v4, v1, 1, 2")
        for r in range(4):
            e(f"v_cmp_eq_u32 vcc, {r}, v4\ns_nop 1\nv_cndmask_b32 v{10+r}, 0, v5, vcc")
        e(f"s_mov_b32 s61, {fbits(CSC)}\nv_mov_b32 v33, 0")
        l = s.spin_head("qw")
        e(f"ds_read_b32 v34, v33 offset:{L_QFLAG}\ns_waitcnt lgkmcnt(0)\nv_cmp_ne_u32 vcc, 1, v34\ns_cbranch_vccz L_qok\ns_sleep 2")
        s.spin_tail(l, "s_branch {}")
        e("L_qok:")
        e(f"ds_read_b128 v[2:5], v32 offset:{L_Q}\nds_read_b128 v[6:9], v32 offset:{L_Q+256}")
        e("s_cmp_ge_u32 s30, 4\ns_cbranch_scc1 L_late2\ns_waitcnt vmcnt(16)\ns_branch L_k\nL_late2:\ns_waitcnt vmcnt(0)\nL_k:\ns_waitcnt lgkmcnt(0)")
        def C(kg): return 16 if kg == 0 else 40 + 8 * (kg - 1)
        for kg in range(8):
            k = 40 + 8 * kg; c = C(kg)
            e(f"v_mfma_f32_16x16x32_bf16 v[{c}:{c+3}], v[{k}:{k+3}], v[2:5], 0")
            e(f"v_mfma_f32_16x16x32_bf16 v[{c}:{c+3}], v[{k+4}:{k+7}], v[6:9], v[{c}:{c+3}]")
        e("s_nop 1")
        for kg in range(8):
            e(f"v_mov_b32_dpp v{24+kg}, v{C(kg)} quad_perm:[0,0,0,0] row_mask:0xf bank_mask:0xf")
        for r in range(1, 4):
            for kg in range(8):
                e(f"v_add_f32_dpp v{24+kg}, v{C(kg)+r}, v{24+kg} quad_perm:[{r},{r},{r},{r}] row_mask:0xf bank_mask:0xf")
        for kg in range(8): e(f"v_cvt_pk_bf16_f32 v{24+kg}, v{24+kg}, v{24+kg}")
        for kg in range(8): e(f"v_and_b32 v{24+kg}, 0xffff0000, v{24+kg}")
        e("v_max3_f32 v32, v24, v25, v26\nv_max3_f32 v32, v32, v27, v28\nv_max3_f32 v32, v32, v29, v30\nv_max_f32 v32, v32, v31")
        s.xrow("v_max_f32", 32, 34)
        e("v_mul_f32 v32, s61, v32")
        for kg in range(8): e(f"v_fma_f32 v{24+kg}, v{24+kg}, s61, -v32")
        for kg in range(8): e(f"v_exp_f32 v{24+kg}, v{24+kg}")
        e("v_add_f32 v35, v24, v25\nv_add_f32 v36, v26, v27\nv_add_f32 v37, v28, v29\nv_add_f32 v38, v30, v31\nv_add_f32 v35, v35, v36\nv_add_f32 v37, v37, v38\nv_add_f32 v35, v35, v37")
        s.xrow("v_add_f32", 35, 34)
        e(f"v_and_b32 v36, 8, v1\nv_lshlrev_b32 v36, 2, v36\ns_lshl_b32 s53, s30, 2\nv_add_u32 v36, s53, v36\nv_mov_b32 v37, 1")
        e(f"s_mov_b64 exec, 0x101\nds_write_b32 v36, v32 offset:{L_M}\nds_write_b32 v36, v35 offset:{L_L}\ns_mov_b64 exec, 1\nds_add_u32 v33, v37 offset:{L_SCNT}\ns_mov_b64 exec, -1")
        e("s_cmp_lt_u32 s30, 4\ns_cbranch_scc1 L_early3\ns_setprio 0")
        s.issue(1, 0, 16)
        e("s_setprio 3\nL_early3:")
        for kg in range(8): e(f"v_cvt_pk_bf16_f32 v{24+kg}, v{24+kg}, v{24+kg}")
        for kg in range(8):
            for r in range(4): e(f"v_and_b32 v{40+4*kg+r}, v{24+kg}, v{10+r}")
        e(f"s_lshl_b32 s53, s30, 11\nv_lshlrev_b32 v32, 4, v1\nv_add_u32 v33, s53, v32")
        for kg in range(8):
            a = 40 + 4 * kg; v = 104 + 8 * kg
            e(f"s_waitcnt vmcnt({14-2*kg})")
            e(f"v_mfma_f32_16x16x32_bf16 v[16:19], v[{a}:{a+3}], v[{v}:{v+3}], {'0' if kg == 0 else 'v[16:19]'}")
            e(f"v_mfma_f32_16x16x32_bf16 v[20:23], v[{a}:{a+3}], v[{v+4}:{v+7}], {'0' if kg == 0 else 'v[20:23]'}")
        s.stamp(8)
        e(f"s_nop 6\nds_write_b128 v33, v[16:19] offset:{L_OBUF}\nds_write_b128 v33, v[20:23] offset:{L_OBUF+1024}")
        e("s_waitcnt lgkmcnt(0)\ns_barrier")
        s.stamp(9)
        e("s_cmp_ge_u32 s30, 4\ns_cbranch_scc1 L_nored")
        e(f"s_and_b32 s53, s30, 1\ns_lshl_b32 s53, s53, 5\nv_mov_b32 v2, s53\ns_lshl_b32 s53, s30, 9\nv_add_u32 v3, s53, v32")
        e("s_mov_b32 exec_hi, 0")
        e(f"ds_read_b128 v[24:27], v2 offset:{L_F}\nds_read_b128 v[28:31], v2 offset:{L_F+16}")
        for w in range(8):
            e(f"ds_read_b128 v[{104+4*w}:{107+4*w}], v3 offset:{L_OBUF + 2048*w}")
        e(f"s_lshl_b32 s54, s35, 11\ns_add_u32 s54, s54, {W_O}")
        for w in range(8):
            e(f"s_waitcnt lgkmcnt({7-w})")
            f = 24 + (w & ~1); sel = w & 1
            for hh in range(2):
                a = 104 + 4 * w + 2 * hh
                if w == 0:
                    e(f"v_pk_mul_f32 v[{16+2*hh}:{17+2*hh}], v[{a}:{a+1}], v[{f}:{f+1}] op_sel:[0,{sel}] op_sel_hi:[1,{sel}]")
                else:
                    e(f"v_pk_fma_f32 v[{16+2*hh}:{17+2*hh}], v[{a}:{a+1}], v[{f}:{f+1}], v[{16+2*hh}:{17+2*hh}] op_sel:[0,{sel},0] op_sel_hi:[1,{sel},1]")
        e("v_min_u32 v16, -2, v16\nv_min_u32 v17, -2, v17\nv_min_u32 v18, -2, v18\nv_min_u32 v19, -2, v19")
        e("buffer_store_dwordx4 v[16:19], v3, s[48:51], s54 offen sc1\ns_mov_b64 exec, -1")
        e("L_nored:")
        e("v_lshrrev_b32 v4, 4, v1\nv_bfe_u32 v5, v1, 1, 1\nv_bfe_u32 v6, v1, 3, 1\nv_and_b32 v7, 1, v4")
        e("v_lshl_add_u32 v6, v7, 1, v6\nv_lshl_add_u32 v6, v5, 2, v6\nv_add_u32 v6, s30, v6\nv_and_b32 v6, 7, v6\nv_lshlrev_b32 v6, 4, v6")
        e("v_lshl_add_u32 v6, v4, 10, v6\nv_lshl_add_u32 v6, v5, 15, v6\nv_bfe_u32 v7, v1, 2, 2\nv_lshl_add_u32 v6, v7, 7, v6\nv_and_b32 v7, 1, v1\nv_lshl_add_u32 v6, v7, 3, v6")
        e(f"v_add_u32 v6, {L_WO}, v6")
        for m in range(8):
            e(f"ds_read_b64_tr_b16 v[{72+4*m}:{73+4*m}], v6 offset:{4096*m}\nds_read_b64_tr_b16 v[{74+4*m}:{75+4*m}], v6 offset:{4096*m+512}")
        e("v_and_b32 v5, 15, v1\nv_lshlrev_b32 v7, 4, v5\nv_lshl_add_u32 v14, v4, 12, v7")
        e("v_and_b32 v8, 1, v4\nv_lshlrev_b32 v8, 1, v8\nv_lshrrev_b32 v9, 1, v4\nv_or_b32 v8, v8, v9")
        e("s_bfe_u32 s53, s30, 0x10001\ns_lshl_b32 s53, s53, 9\ns_lshr_b32 s54, s30, 2\ns_lshl_b32 s54, s54, 8\ns_add_u32 s53, s53, s54\ns_and_b32 s54, s30, 1\ns_lshl_b32 s54, s54, 3\ns_add_u32 s53, s53, s54")
        e("v_lshl_add_u32 v15, v8, 1, v7\nv_add_u32 v15, s53, v15")
        e("v_and_b32 v9, 1, v1\nv_lshlrev_b32 v9, 9, v9\nv_lshl_add_u32 v32, v4, 4, v9")
        e("s_mul_i32 s53, s30, 56\nv_lshl_add_u32 v33, v5, 2, v8\nv_add_u32 v33, s53, v33\nv_lshlrev_b32 v34, 1, v33\nv_lshlrev_b32 v33, 2, v33")
        e(f"ds_read_u16 v34, v34 offset:{L_XROW}")
        e("s_and_b32 s53, s30, 3\ns_mul_i32 s53, s53, 896\nv_lshl_add_u32 v9, v1, 1, s53")
        for k, base in enumerate((104, 112, 120)):
            for i in range(7):
                e(f"ds_read_u16 v{base+i}, v9 offset:{L_PAR + 4096*k + 128*i}")
        e("v_lshrrev_b32 v35, 3, v1\nv_lshlrev_b32 v35, 14, v35\nv_and_b32 v9, 7, v1\nv_lshl_add_u32 v35, v9, 2, v35")
        e(f"s_lshl_b32 s55, s34, 14\ns_lshl_b32 s53, s30, 8\ns_add_u32 s55, s55, s53\ns_add_u32 s55, s55, {W_O}")
        e(f"s_lshl_b32 s56, s32, 17\ns_add_u32 s56, s56, {W_OUT}\ns_and_b32 s54, s35, 63\ns_lshl_b32 s54, s54, 8\ns_add_u32 s57, s56, s54\ns_lshl_b32 s54, s30, 5\ns_add_u32 s57, s57, s54")
        e("s_lshl_b32 s54, s31, 14\ns_add_u32 s56, s56, s54\ns_add_u32 s56, s56, s53")
        e("s_waitcnt lgkmcnt(0)")
        for base in (104, 112, 120):
            for i in range(7): e(f"v_lshlrev_b32 v{base+i}, 16, v{base+i}")
        e(f"v_lshlrev_b32 v34, 16, v34\nv_mov_b32 v128, {fbits(K1)}\nv_mov_b32 v129, {fbits(K0)}")
        def poll(tag, so, sl, first):
            f = s.lab(tag + "f")
            if first: e(f"s_sleep {first}")
            e(f"s_mov_b32 s60, 0\ns_branch {f}")
            l = s.lab(tag); e(f"{l}:\ns_sleep {sl}\n{f}:")
            e(f"buffer_load_dwordx4 v[16:19], v14, s[48:51], {so} offen sc1\nbuffer_load_dwordx4 v[20:23], v14, s[48:51], {so} offen offset:2048 sc1")
            e("s_waitcnt vmcnt(0)\nv_max3_u32 v24, v16, v17, v18\nv_max3_u32 v25, v19, v20, v21\nv_max3_u32 v24, v24, v22, v23\nv_max_u32 v24, v24, v25\nv_cmp_eq_u32 vcc, -1, v24")
            s.spin_tail(l, "s_cbranch_vccnz {}")
            e("v_pk_add_f32 v[16:17], v[16:17], v[20:21]\nv_pk_add_f32 v[18:19], v[18:19], v[22:23]")
            s.rscatter(16)
        poll("h1", "s55", o["sl1"], o["first1"])
        s.stamp(10)
        e(f"v_cvt_pk_bf16_f32 v16, v16, v16\nds_write_b16 v15, v16 offset:{L_OBF}\ns_waitcnt lgkmcnt(0)\ns_barrier")
        s.stamp(11)
        e("s_cmp_eq_u32 s30, 7\ns_cbranch_scc1 L_nowo")
        for m in range(8):
            e(f"ds_read_b128 v[{40+4*m}:{43+4*m}], v32 offset:{L_OBF + 64*m}")
        for m in range(8):
            e(f"s_waitcnt lgkmcnt({7-m})\nv_mfma_f32_16x16x32_bf16 v[16:19], v[{40+4*m}:{43+4*m}], v[{72+4*m}:{75+4*m}], {'0' if m == 0 else 'v[16:19]'}")
        e("s_nop 7\nv_add_f32_dpp v20, v17, v16 row_shl:8 row_mask:0xf bank_mask:0x3\nv_add_f32_dpp v20, v16, v17 row_shr:8 row_mask:0xf bank_mask:0xc")
        e("v_min_u32 v20, -2, v20\nbuffer_store_dword v20, v35, s[48:51], s57 offen sc1")
        e("L_nowo:")
        s.stamp(12)
        e("s_mov_b32 exec_lo, 0x3fff3fff\ns_mov_b32 exec_hi, 0x3fff3fff")
        poll("h2", "s56", o["sl2"], o["first2"])
        s.stamp(13)
        s.bfround(16)
        e("v_add_f32 v16, v16, v34"); s.bfround(16)
        e(f"ds_write_b32 v33, v16 offset:{L_H}\ns_mov_b64 exec, -1")
        e("v_lshlrev_b32 v2, 2, v1\nv_mov_b32 v3, 0\ns_and_b32 s53, s35, 63\ns_mul_i32 s58, s53, 28\ns_lshr_b32 s54, s30, 2\ns_lshl_b32 s54, s54, 4\ns_add_u32 s54, s54, s58\nv_mov_b32 v4, s54")
        e(f"s_mov_b32 s61, {fbits(1.0/448)}\ns_mov_b32 s62, {fbits(1e-5)}")
        e("s_waitcnt lgkmcnt(0)\ns_barrier")
        e(f"ds_read_b32 v31, v3 offset:{L_H}")
        for i in range(3):
            e(f"ds_read2st64_b32 v[{24+2*i}:{25+2*i}], v2 offset0:{L_H//256 + 2*i} offset1:{L_H//256 + 2*i+1}")
        e(f"ds_read_b32 v30, v2 offset:{L_H + 6*256}")
        e(f"v_add_u32 v4, {L_H}, v4\nds_read2_b32 v[36:37], v4 offset0:0 offset1:1\nds_read2_b32 v[38:39], v4 offset0:2 offset1:3")
        e("s_waitcnt lgkmcnt(2)")
        for i in range(7): e(f"v_sub_f32 v{24+i}, v{24+i}, v31")
        e("v_add_f32 v6, v24, v25\nv_mul_f32 v7, v24, v24\nv_fmac_f32 v7, v25, v25")
        for i in range(2, 7): e(f"v_add_f32 v6, v6, v{24+i}\nv_fmac_f32 v7, v{24+i}, v{24+i}")
        s.red16("v_add_f32", [6, 7])
        for sw in ("v_permlane16_swap_b32", "v_permlane32_swap_b32"):
            e(f"v_mov_b32 v8, v6\nv_mov_b32 v9, v7\ns_nop 0\n{sw} v6, v8\n{sw} v7, v9\nv_add_f32 v6, v6, v8\nv_add_f32 v7, v7, v9")
        e("v_mul_f32 v6, s61, v6\nv_mul_f32 v7, s61, v7\nv_fma_f32 v7, -v6, v6, v7\nv_max_f32 v7, 0, v7\nv_add_f32 v6, v31, v6")
        e("v_cvt_pk_bf16_f32 v8, v6, v7\nv_and_b32 v9, 0xffff0000, v8\nv_lshlrev_b32 v8, 16, v8")
        e("v_add_f32 v9, s62, v9"); s.bfround(9)
        e("v_sqrt_f32 v9, v9\nv_sub_f32 v6, v6, v8"); s.bfround(9)
        e("v_rcp_f32 v10, v9\ns_waitcnt lgkmcnt(0)")
        e("v_pk_add_f32 v[36:37], v[36:37], v[8:9] op_sel_hi:[1,0] neg_lo:[0,1] neg_hi:[0,1]\nv_pk_add_f32 v[38:39], v[38:39], v[8:9] op_sel_hi:[1,0] neg_lo:[0,1] neg_hi:[0,1]")
        e("v_mul_f32 v6, v6, v10\nv_mul_f32 v7, v7, v10\nv_mul_f32 v7, v7, v10")
        e("v_cvt_pk_bf16_f32 v12, v6, v7\nv_and_b32 v13, 0xffff0000, v12\nv_lshlrev_b32 v12, 16, v12")
        e("v_add_f32 v13, s62, v13"); s.bfround(13)
        def rnd4():
            e("v_cvt_pk_bf16_f32 v36, v36, v37\nv_cvt_pk_bf16_f32 v38, v38, v39\nv_and_b32 v37, 0xffff0000, v36\nv_and_b32 v39, 0xffff0000, v38\nv_lshlrev_b32 v36, 16, v36\nv_lshlrev_b32 v38, 16, v38")
        e("v_sqrt_f32 v13, v13"); rnd4(); s.bfround(13)
        e("v_pk_mul_f32 v[36:37], v[36:37], v[10:11] op_sel_hi:[1,0]\nv_pk_mul_f32 v[38:39], v[38:39], v[10:11] op_sel_hi:[1,0]\nv_rcp_f32 v10, v13")
        rnd4()
        e("v_pk_add_f32 v[36:37], v[36:37], v[12:13] op_sel_hi:[1,0] neg_lo:[0,1] neg_hi:[0,1]\nv_pk_add_f32 v[38:39], v[38:39], v[12:13] op_sel_hi:[1,0] neg_lo:[0,1] neg_hi:[0,1]")
        rnd4()
        e("v_pk_mul_f32 v[36:37], v[36:37], v[10:11] op_sel_hi:[1,0]\nv_pk_mul_f32 v[38:39], v[38:39], v[10:11] op_sel_hi:[1,0]")
        rnd4()
        s.stamp(14)
        e("v_mov_b32 v16, 0\nv_mov_b32 v17, 0\nv_mov_b32 v18, 0\nv_mov_b32 v19, 0")
        def pk_stage(items):
            def sel(i): return i & 1
            def pr(b, i): return f"v[{b + (i & ~1)}:{b + (i & ~1) + 1}]"
            for T, A, i, t in items:
                x = sel(i); e(f"v_pk_fma_f32 v[{t}:{t+1}], v[{T}:{T+1}], {pr(104,i)}, {pr(112,i)} op_sel:[0,{x},{x}] op_sel_hi:[1,{x},{x}]")
            for T, A, i, t in items: e(f"v_pk_mul_f32 v[{t+2}:{t+3}], v[{t}:{t+1}], v[{t}:{t+1}]")
            for T, A, i, t in items: e(f"v_pk_fma_f32 v[{t+2}:{t+3}], v[{t+2}:{t+3}], v[128:129], v[128:129] op_sel:[0,0,1] op_sel_hi:[1,0,1]")
            for T, A, i, t in items: e(f"v_pk_mul_f32 v[{t+2}:{t+3}], v[{t+2}:{t+3}], v[{t}:{t+1}]")
            for T, A, i, t in items: e(f"v_exp_f32 v{t+2}, v{t+2}\nv_exp_f32 v{t+3}, v{t+3}")
            for T, A, i, t in items:
                x = sel(i); e(f"v_pk_mul_f32 v[{t}:{t+1}], v[{t}:{t+1}], {pr(120,i)} op_sel:[0,{x}] op_sel_hi:[1,{x}]")
            for T, A, i, t in items: e(f"v_pk_add_f32 v[{t+2}:{t+3}], v[{t+2}:{t+3}], 1.0 op_sel_hi:[1,0]")
            for T, A, i, t in items: e(f"v_rcp_f32 v{t+2}, v{t+2}\nv_rcp_f32 v{t+3}, v{t+3}")
            if len(items) == 1: e("s_nop 0")
            for T, A, i, t in items: e(f"v_pk_fma_f32 v[{A}:{A+1}], v[{t}:{t+1}], v[{t+2}:{t+3}], v[{A}:{A+1}]")
        def sc_stage(items):
            for T, A, i, t in items: e(f"v_fma_f32 v{t}, v{T}, v{104+i}, v{112+i}")
            for T, A, i, t in items: e(f"v_mul_f32 v{t+1}, v{t}, v{t}")
            for T, A, i, t in items: e(f"v_fma_f32 v{t+1}, v{t+1}, v128, v129")
            for T, A, i, t in items: e(f"v_mul_f32 v{t+1}, v{t+1}, v{t}")
            for T, A, i, t in items: e(f"v_exp_f32 v{t+1}, v{t+1}")
            for T, A, i, t in items: e(f"v_mul_f32 v{t}, v{t}, v{120+i}")
            for T, A, i, t in items: e(f"v_add_f32 v{t+1}, 1.0, v{t+1}")
            for T, A, i, t in items: e(f"v_rcp_f32 v{t+1}, v{t+1}")
            for T, A, i, t in items: e(f"v_fmac_f32 v{A}, v{t}, v{t+1}")
        pk_stage([(36, 16, i, 40 + 4 * i) for i in range(7)])
        e("s_cmp_ge_u32 s30, 4\ns_cbranch_scc1 L_mlp1")
        pk_stage([(38, 18, i, 40 + 4 * i) for i in range(7)])
        e("s_branch L_mlp2\nL_mlp1:")
        sc_stage([(38, 18, i, 40 + 2 * i) for i in range(7)])
        e("L_mlp2:")
        s.rscatter(16)
        s.red16("v_add_f32", [16])
        e("v_lshrrev_b32 v4, 4, v1\nv_and_b32 v8, 1, v4\nv_lshlrev_b32 v8, 1, v8\nv_lshrrev_b32 v9, 1, v4\nv_or_b32 v8, v8, v9")
        e("s_and_b32 s53, s30, 3\ns_lshl_b32 s53, s53, 5\ns_lshr_b32 s54, s30, 2\ns_lshl_b32 s54, s54, 4\ns_add_u32 s53, s53, s54\nv_lshl_add_u32 v8, v8, 2, s53")
        e(f"s_mov_b32 exec_lo, 0x00010001\ns_mov_b32 exec_hi, 0x00010001\nds_write_b32 v8, v16 offset:{L_PART}\ns_mov_b64 exec, -1\ns_waitcnt lgkmcnt(0)\ns_barrier")
        e("s_cmp_lg_u32 s30, 0\ns_cbranch_scc1 L_fin")
        e("s_mov_b64 exec, 0x7f")
        e(f"v_add_u32 v5, {L_PART}, v2\nds_read2_b32 v[16:17], v5 offset0:0 offset1:8\nds_read2_b32 v[18:19], v5 offset0:16 offset1:24")
        e(f"v_add_u32 v4, s58, v2\nds_read_b32 v20, v4 offset:{L_H}\nds_read_b32 v21, v3 offset:{L_B2}")
        s.srd(36, 24, 3584)
        e("s_mul_i32 s53, s32, 896\ns_lshr_b32 s54, s58, 1\ns_add_u32 s53, s53, s54\nv_lshlrev_b32 v5, 1, v1")
        e("s_waitcnt lgkmcnt(0)\nv_add_f32 v16, v16, v17\nv_add_f32 v18, v18, v19\nv_add_f32 v16, v16, v18")
        s.bfround(16)
        e("v_add_f32 v16, v16, v21"); s.bfround(16)
        e("v_add_f32 v16, v16, v20\nv_cvt_pk_bf16_f32 v16, v16, v16\nbuffer_store_short v16, v5, s[36:39], s53 offen")
        s.stamp(15)
        s.write_stamps([0, 9, 10, 11, 12, 13, 14, 15])
        e("s_endpgm\nL_fin:")
        if o["stamps"]:
            e("s_cmp_lg_u32 s30, 7\ns_cbranch_scc1 L_end")
            s.write_stamps([8])

def main():
    import json
    out = sys.argv[1]
    opts = json.loads(sys.argv[2]) if len(sys.argv) > 2 else {}
    open(out, "w").write(G(**opts).gen())
if __name__ == "__main__":
    main()
```

```python
import sys, math
NAME = "sequential_preLN__sliding_block_cached__mixer_token_mlp__decode_kernel"

L_QFLAG, L_SCNT = 0x0, 0x4
L_B2 = 0x8
L_M, L_L, L_F = 0x40, 0x80, 0xC0
L_Q = 0x100
L_OBF = 0x500
L_H = 0x900
L_XN = 0x1000
L_PART = 0x1E00
L_PAR = 0x2000
L_WQ = 0x5000
L_XROW = 0x8800
L_OBUF = 0x9000
L_WO = 0xD000
L_END = 0x1D000
W_Q = 0x0
W_ST = 0x8000
W_O = 0x10000
W_OUT = 0x100000
W_STAMP = 0x10000000
SPIN = 200000

CSC = math.log2(math.e) / 16.0
K0 = -2.0 * math.log2(math.e) * math.sqrt(2.0 / math.pi)
K1 = K0 * 0.044715
import struct
def fbits(x): return "0x%08x" % struct.unpack("<I", struct.pack("<f", x))[0]

class G:
    def __init__(s, **o):
        s.L = []
        s.o = dict(kvflags="nt", wflags="", map_="g", stamps=False, rot=True, sl_bar=8, sl_q=6, sl1=4, sl2=4, first1=0, first2=0)
        s.o.update(o)
        s.uid = 0
    def e(s, t):
        for l in t.split("\n"):
            l = l.strip()
            if l: s.L.append(("" if l.endswith(":") else "    ") + l)
    def lab(s, p):
        s.uid += 1
        return f"L_{p}_{s.uid}"
    def stamp(s, i):
        if s.o["stamps"]:
            s.e(f"s_memrealtime s[{64+2*i}:{65+2*i}]")
    def write_stamps(s, idxs):
        if not s.o["stamps"]: return
        s.e("s_waitcnt lgkmcnt(0)\ns_mov_b64 exec, 1\nv_mov_b32 v2, 0")
        if s.o["stamps"] == "dbg":
            s.srd(44, 26, 256)
            for i in idxs:
                r = 64 + 2 * i
                if i == 0:
                    s.e(f"s_not_b32 s63, s64\nv_mov_b32 v4, s63\nbuffer_atomic_umax v4, v2, s[44:47], 0 offen offset:4 sc1\ns_nop 1")
                if i == 1: continue
                d = 0 if i == 0 else i
                if i == 0: continue
                s.e(f"v_mov_b32 v4, s{r}\nbuffer_atomic_umax v4, v2, s[44:47], 0 offen offset:{4*d} sc1\ns_nop 1")
            return
        s.e(f"s_lshl_b32 s63, s2, 7\ns_add_u32 s63, s63, {W_STAMP}")
        for i in idxs:
            r = 64 + 2 * i
            s.e(f"v_mov_b32 v4, s{r}\nv_mov_b32 v5, s{r+1}\nbuffer_store_dwordx2 v[4:5], v2, s[48:51], s63 offen offset:{8*i}\ns_nop 1")
    def srd(s, d, b, n):
        s.e(f"s_mov_b32 s{d}, s{b}\ns_mov_b32 s{d+1}, s{b+1}\ns_mov_b32 s{d+2}, {n}\ns_mov_b32 s{d+3}, 0x20000")
    def spin_head(s, p):
        l = s.lab(p); s.e(f"s_mov_b32 s60, 0\n{l}:"); return l
    def spin_tail(s, l, cond):
        o = s.lab("out")
        s.e(f"s_add_u32 s60, s60, 1\ns_cmp_gt_u32 s60, {SPIN}\ns_cbranch_scc1 {o}")
        s.e(cond.format(l))
        s.e(f"{o}:")
    def red8(s, op, r):
        for c in ("quad_perm:[1,0,3,2]", "quad_perm:[2,3,0,1]", "row_half_mirror"):
            s.e(f"s_nop 1\n{op}_dpp v{r}, v{r}, v{r} {c} row_mask:0xf bank_mask:0xf")
    def red16(s, op, regs):
        for c in ("quad_perm:[1,0,3,2]", "quad_perm:[2,3,0,1]", "row_half_mirror", "row_mirror"):
            s.e("s_nop 1" if len(regs) == 1 else "s_nop 0")
            for r in regs:
                s.e(f"{op}_dpp v{r}, v{r}, v{r} {c} row_mask:0xf bank_mask:0xf")
    def xrow(s, op, r, t):
        for sw in ("v_permlane16_swap_b32", "v_permlane32_swap_b32"):
            s.e(f"v_mov_b32 v{t}, v{r}\ns_nop 1\n{sw} v{r}, v{t}\ns_nop 0\n{op} v{r}, v{r}, v{t}")
    def rscatter(s, x):
        s.e(f"s_nop 1\nv_permlane32_swap_b32 v{x}, v{x+1}\nv_permlane32_swap_b32 v{x+2}, v{x+3}\ns_nop 0")
        s.e(f"v_add_f32 v{x}, v{x}, v{x+1}\nv_add_f32 v{x+2}, v{x+2}, v{x+3}\ns_nop 1")
        s.e(f"v_permlane16_swap_b32 v{x}, v{x+2}\ns_nop 0\nv_add_f32 v{x}, v{x}, v{x+2}")
    def bfround(s, r):
        s.e(f"v_cvt_pk_bf16_f32 v{r}, v{r}, v{r}\nv_and_b32 v{r}, 0xffff0000, v{r}")

    def gen(s):
        o, e = s.o, s.e
        s.L.append(f"; @launch grid=(256,1,1) block=(768,1,1) lds={L_END}")
        s.L.append('.amdgcn_target "amdgcn-amd-amdhsa--gfx950"\n.text')
        s.L.append(f".globl {NAME}\n.p2align 8\n.type {NAME},@function\n{NAME}:")
        e("s_cmp_ge_u32 s2, 256\ns_cbranch_scc1 L_end")
        s.stamp(0)
        e("s_load_dwordx16 s[4:19], s[0:1], 0\ns_load_dwordx8 s[20:27], s[0:1], 64\ns_load_dwordx2 s[28:29], s[0:1], 96")
        e("s_setprio 3")
        e("v_lshrrev_b32 v2, 6, v0\nv_and_b32 v1, 63, v0\ns_nop 0\nv_readfirstlane_b32 s30, v2")
        if o["map_"] == "g":
            e("s_and_b32 s31, s2, 7\ns_lshr_b32 s33, s2, 3\ns_lshr_b32 s32, s33, 3\ns_and_b32 s33, s33, 7")
        else:
            e("s_and_b32 s33, s2, 7\ns_lshr_b32 s31, s2, 3\ns_lshr_b32 s32, s31, 3\ns_and_b32 s31, s31, 7")
        e("s_lshl_b32 s34, s32, 3\ns_add_u32 s34, s34, s31\ns_lshl_b32 s35, s34, 3\ns_add_u32 s35, s35, s33")
        e("s_cmp_ge_u32 s30, 4\ns_cbranch_scc1 L_stream\ns_cmp_eq_u32 s30, 0\ns_cbranch_scc1 L_qwave")
        s.prefetch()
        s.qwave()
        s.stream()
        e("L_end:\ns_endpgm")
        s.L.append(f""".section .rodata,"a"
.p2align 6
.amdhsa_kernel {NAME}
  .amdhsa_next_free_vgpr 168
  .amdhsa_next_free_sgpr 96
  .amdhsa_accum_offset 168
  .amdhsa_group_segment_fixed_size 0
  .amdhsa_kernarg_size 104
  .amdhsa_user_sgpr_count 2
  .amdhsa_user_sgpr_kernarg_segment_ptr 1
  .amdhsa_system_sgpr_workgroup_id_x 1
.end_amdhsa_kernel""")
        return "\n".join(s.L) + "\n"

    def prefetch(s):
        o, e = s.o, s.e
        wf = o["wflags"]
        e("s_setprio 1")
        e("v_lshrrev_b32 v2, 3, v1\nv_mul_u32_u24 v3, 896, v2\nv_bfe_u32 v4, v1, 4, 1\nv_and_b32 v5, 7, v1\nv_sub_u32 v5, v5, v4")
        for k in range(4):
            par, kh = k & 1, k >> 1
            e(f"v_subrev_u32 v6, {2*par+4*kh}, v5\nv_and_b32 v6, 7, v6\nv_cmp_ne_u32 s[{40+2*k}:{41+2*k}], 7, v6\nv_lshl_add_u32 v{10+k}, v6, 4, v3")
        e("v_lshlrev_b32 v14, 4, v1")
        e("s_waitcnt lgkmcnt(0)")
        s.srd(36, 12, 4096 * 896)
        e("s_mul_i32 s52, s31, 458752\ns_mul_i32 s53, s33, 112\ns_add_u32 s52, s52, s53")
        e("s_barrier")
        e("s_cmp_eq_u32 s30, 2\ns_cbranch_scc1 L_pf2\ns_cmp_eq_u32 s30, 3\ns_cbranch_scc1 L_pf3")
        for pw in range(3):
            if pw: e(f"L_pf{pw+1}:")
            s.srd(56, (16, 18, 20)[pw], 3584)
            for i in range(4):
                e(f"s_mov_b32 m0, {L_PAR + pw*4096 + i*1024}\ns_movk_i32 s53, {i*1024}\nbuffer_load_dwordx4 v14, s[56:59], s53 offen lds")
            if pw == 0:
                s.srd(56, 4, 3584)
                e(f"s_mov_b32 m0, {L_XROW}\ns_mul_i32 s53, s32, 896\nbuffer_load_dwordx4 v14, s[56:59], s53 offen lds")
            if pw == 1:
                s.srd(56, 22, 2)
                e("v_mov_b32 v15, 0\nbuffer_load_ushort v16, v15, s[56:59], 0 offen")
            for ch in range(pw, 64, 3):
                k = (ch & 1) + 2 * (ch >> 5)
                e(f"s_mov_b32 m0, {L_WO + ch*1024}\ns_add_u32 s53, s52, {ch*8*896}\ns_mov_b64 exec, s[{40+2*k}:{41+2*k}]")
                e(f"buffer_load_dwordx4 v{10+k}, s[36:39], s53 offen {wf} lds")
            e("s_mov_b64 exec, -1\ns_waitcnt vmcnt(0)")
            if pw == 1:
                e(f"v_lshlrev_b32 v16, 16, v16\nds_write_b32 v15, v16 offset:{L_B2}\ns_waitcnt lgkmcnt(0)")
            e("s_barrier\ns_endpgm")

    def qwave(s):
        o, e = s.o, s.e
        wf = o["wflags"]
        e("L_qwave:")
        e(f"v_mov_b32 v2, 0\nv_mov_b32 v3, 0\nds_write_b64 v2, v[2:3] offset:{L_QFLAG}")
        e("v_lshrrev_b32 v4, 4, v1\nv_and_b32 v5, 15, v1\nv_mul_u32_u24 v4, 896, v4\nv_mul_u32_u24 v5, 56, v5\nv_add_u32 v6, v4, v5")
        e("v_lshrrev_b32 v7, 1, v1\nv_lshlrev_b32 v7, 13, v7\nv_and_b32 v8, 1, v1\nv_lshl_add_u32 v7, v8, 4, v7")
        e("v_lshlrev_b32 v9, 4, v1")
        e("v_lshrrev_b32 v10, 4, v1\nv_lshlrev_b32 v10, 14, v10\nv_and_b32 v11, 15, v1\nv_lshl_add_u32 v10, v11, 4, v10")
        e("v_mov_b32 v12, -1\nv_mov_b32 v13, -1\nv_mov_b32 v14, -1\nv_mov_b32 v15, -1")
        e("s_waitcnt lgkmcnt(0)")
        s.srd(36, 4, 3584)
        s.srd(40, 10, 448 * 8192)
        s.srd(44, 26, 256)
        s.srd(48, 28, 0x20000000)
        e("buffer_load_dwordx4 v[16:19], v6, s[36:39], 0 offen\nbuffer_load_dwordx4 v[20:23], v6, s[36:39], 0 offen offset:16")
        e("buffer_load_dwordx4 v[24:27], v6, s[36:39], 0 offen offset:32\nbuffer_load_dwordx2 v[28:29], v6, s[36:39], 0 offen offset:48")
        e("s_lshl_b32 s54, s33, 2\ns_add_u32 s54, s54, s32\ns_lshl_b32 s52, s31, 10\ns_lshl_b32 s53, s54, 5\ns_add_u32 s52, s52, s53")
        for m in range(14):
            e(f"s_mov_b32 m0, {L_WQ + m*1024}\ns_add_u32 s53, s52, {m*32*8192}\nbuffer_load_dwordx4 v7, s[40:43], s53 offen {wf} lds")
        e(f"s_lshl_b32 s55, s31, 5\ns_add_u32 s55, s55, s54\ns_lshl_b32 s55, s55, 7")
        e(f"s_lshl_b32 s56, s34, 7\ns_lshl_b32 s53, s33, 4\ns_add_u32 s56, s56, s53\ns_add_u32 s56, s56, {W_ST}")
        e(f"s_lshl_b32 s57, s35, 11\ns_add_u32 s57, s57, {W_O}")
        e(f"s_lshl_b32 s58, s32, 17\ns_and_b32 s53, s35, 63\ns_lshl_b32 s53, s53, 8\ns_add_u32 s58, s58, s53\ns_add_u32 s58, s58, {W_OUT}\ns_add_u32 s59, s58, 65536")
        e("buffer_store_dwordx4 v[12:15], v9, s[48:51], s57 offen sc1\nbuffer_store_dwordx4 v[12:15], v9, s[48:51], s57 offen offset:1024 sc1")
        e("buffer_store_dwordx4 v[12:15], v10, s[48:51], s58 offen sc1\nbuffer_store_dwordx4 v[12:15], v10, s[48:51], s59 offen sc1")
        e("s_mov_b64 exec, 0xff\nbuffer_store_dwordx4 v[12:15], v9, s[48:51], s55 offen sc1")
        e("s_mov_b64 exec, 1\nbuffer_store_dwordx4 v[12:15], v9, s[48:51], s56 offen sc1\ns_mov_b64 exec, -1")
        e("s_barrier")
        e("s_waitcnt vmcnt(20)")
        s.stamp(1)
        for k in range(14):
            e(f"v_lshlrev_b32 v{32+2*k}, 16, v{16+k}\nv_and_b32 v{33+2*k}, 0xffff0000, v{16+k}")
        e("v_mov_b32_dpp v60, v32 row_newbcast:0 row_mask:0xf bank_mask:0xf")
        e("v_mov_b32 v62, 0\nv_mov_b32 v63, 0\nv_mov_b32 v64, 0\nv_mov_b32 v65, 0")
        for k in range(14):
            e(f"v_pk_add_f32 v[66:67], v[{32+2*k}:{33+2*k}], v[60:61] op_sel_hi:[1,0] neg_lo:[0,1] neg_hi:[0,1]")
            e(f"v_pk_add_f32 v[62:63], v[62:63], v[66:67]\nv_pk_fma_f32 v[64:65], v[66:67], v[66:67], v[64:65]")
        e("v_add_f32 v62, v62, v63\nv_add_f32 v64, v64, v65")
        s.red16("v_add_f32", [62, 64])
        e(f"s_mov_b32 s61, {fbits(1.0/448)}\ns_mov_b32 s62, {fbits(1e-5)}")
        e("v_mul_f32 v62, s61, v62\nv_mul_f32 v64, s61, v64\nv_fma_f32 v64, -v62, v62, v64\nv_max_f32 v64, 0, v64\nv_add_f32 v62, v60, v62")
        s.bfround(62); s.bfround(64)
        e("v_add_f32 v64, s62, v64"); s.bfround(64)
        e("v_sqrt_f32 v64, v64\ns_nop 0"); s.bfround(64)
        e("v_rcp_f32 v64, v64")
        for k in range(14):
            a = 32 + 2 * k
            e(f"v_pk_add_f32 v[{a}:{a+1}], v[{a}:{a+1}], v[62:63] op_sel_hi:[1,0] neg_lo:[0,1] neg_hi:[0,1]")
            e(f"v_cvt_pk_bf16_f32 v66, v{a}, v{a+1}\nv_lshlrev_b32 v{a}, 16, v66\nv_and_b32 v{a+1}, 0xffff0000, v66")
            e(f"v_pk_mul_f32 v[{a}:{a+1}], v[{a}:{a+1}], v[64:65] op_sel_hi:[1,0]")
            e(f"v_cvt_pk_bf16_f32 v{16+k}, v{a}, v{a+1}")
        for k in range(7):
            e(f"ds_write_b64 v6, v[{16+2*k}:{17+2*k}] offset:{L_XN + 8*k}")
        e("v_and_b32 v2, 3, v1\nv_mul_u32_u24 v2, 896, v2\nv_lshrrev_b32 v3, 4, v1\nv_lshl_add_u32 v2, v3, 4, v2")
        e("v_and_b32 v4, 15, v1\nv_lshlrev_b32 v4, 3, v4\nv_lshl_add_u32 v4, v3, 8, v4")
        e("s_waitcnt lgkmcnt(0)")
        for m in range(14):
            e(f"ds_read_b128 v[{32+4*m}:{35+4*m}], v2 offset:{L_XN + 64*m}")
        e("s_waitcnt vmcnt(0)")
        s.stamp(2)
        e("s_lshr_b32 s53, s2, 3\ns_and_b32 s53, s53, 3\ns_lshl_b32 s53, s53, 6\nv_mov_b32 v6, 1\nv_mov_b32 v7, 0")
        e("s_mov_b64 exec, 1\nbuffer_atomic_add v6, v7, s[44:47], s53 offen sc1\ns_mov_b64 exec, -1")
        for m in range(14):
            e(f"ds_read_b64_tr_b16 v[{96+4*m}:{97+4*m}], v4 offset:{L_WQ + 1024*m}\nds_read_b64_tr_b16 v[{98+4*m}:{99+4*m}], v4 offset:{L_WQ + 1024*m + 128}")
        e("s_waitcnt lgkmcnt(0)")
        for m in range(14):
            e(f"v_mfma_f32_16x16x32_bf16 v[16:19], v[{96+4*m}:{99+4*m}], v[{32+4*m}:{35+4*m}], {'0' if m == 0 else 'v[16:19]'}")
        e("v_and_b32 v2, 3, v1\nv_lshlrev_b32 v2, 5, v2\nv_lshl_add_u32 v2, v3, 3, v2\ns_nop 7")
        e("v_cvt_pk_bf16_f32 v20, v16, v17\nv_cvt_pk_bf16_f32 v21, v18, v19\nv_min_u32 v20, -2, v20\nv_min_u32 v21, -2, v21")
        e("s_mov_b32 exec_lo, 0x000f000f\ns_mov_b32 exec_hi, 0x000f000f\nbuffer_store_dwordx2 v[20:21], v2, s[48:51], s55 offen sc1\ns_mov_b64 exec, -1")
        s.stamp(3)
        e("v_and_b32 v2, 3, v1\nv_lshlrev_b32 v2, 6, v2")
        l = s.spin_head("bar")
        e(f"s_sleep {o['sl_bar']}\nbuffer_load_dword v6, v2, s[44:47], 0 offen sc1\ns_waitcnt vmcnt(0)\nv_cmp_ne_u32 vcc, 64, v6")
        s.spin_tail(l, "s_cbranch_vccnz {}")
        s.stamp(4)
        e("v_lshrrev_b32 v2, 1, v1\nv_lshlrev_b32 v2, 7, v2\nv_and_b32 v3, 1, v1\nv_lshl_add_u32 v2, v3, 4, v2")
        e("s_lshl_b32 s53, s31, 12\ns_lshl_b32 s54, s32, 5\ns_add_u32 s53, s53, s54")
        first = s.lab("qf")
        e(f"s_mov_b32 s60, 0\ns_branch {first}")
        l = s.lab("q"); e(f"{l}:\ns_sleep {o['sl_q']}\n{first}:")
        e("buffer_load_dwordx4 v[16:19], v2, s[48:51], s53 offen sc1\ns_waitcnt vmcnt(0)")
        e("v_max3_u32 v6, v16, v17, v18\nv_max_u32 v6, v6, v19\nv_cmp_eq_u32 vcc, -1, v6")
        s.spin_tail(l, "s_cbranch_vccnz {}")
        e(f"ds_write_b128 v9, v[16:19] offset:{L_Q}\nv_mov_b32 v6, 1\ns_waitcnt lgkmcnt(0)\nds_write_b32 v7, v6 offset:{L_QFLAG}")
        s.stamp(5)
        l = s.spin_head("sc")
        e(f"s_sleep 2\nds_read_b32 v6, v7 offset:{L_SCNT}\ns_waitcnt lgkmcnt(0)\nv_cmp_ne_u32 vcc, 8, v6")
        s.spin_tail(l, "s_cbranch_vccnz {}")
        s.stamp(6)
        e(f"v_and_b32 v2, 15, v1\nv_lshlrev_b32 v2, 2, v2\nds_read_b32 v16, v2 offset:{L_M}\nds_read_b32 v17, v2 offset:{L_L}\ns_waitcnt lgkmcnt(0)")
        e("v_mov_b32 v18, v16")
        s.red8("v_max_f32", 18)
        e("v_sub_f32 v19, v16, v18\nv_exp_f32 v19, v19\ns_nop 0\nv_mul_f32 v19, v19, v17")
        s.red8("v_add_f32", 19)
        e("v_min_u32 v18, -2, v18\nv_min_u32 v19, -2, v19\nv_and_b32 v3, 8, v1")
        e("s_mov_b64 exec, 0x101\nbuffer_store_dwordx2 v[18:19], v3, s[48:51], s56 offen sc1\ns_mov_b64 exec, -1")
        e(f"v_and_b32 v4, 7, v1\nv_lshl_add_u32 v3, v4, 4, v3\ns_lshl_b32 s53, s34, 7\ns_add_u32 s53, s53, {W_ST}")
        e("s_mov_b64 exec, 0xffff")
        l = s.spin_head("st")
        e(f"s_sleep {o['sl_q']}\nbuffer_load_dwordx2 v[20:21], v3, s[48:51], s53 offen sc1\ns_waitcnt vmcnt(0)")
        e("v_max_u32 v6, v20, v21\nv_cmp_eq_u32 vcc, -1, v6")
        s.spin_tail(l, "s_cbranch_vccnz {}")
        e("v_mov_b32 v22, v20")
        s.red8("v_max_f32", 22)
        e("v_sub_f32 v20, v20, v22\nv_exp_f32 v20, v20\nv_sub_f32 v16, v16, v22\nv_mul_f32 v20, v20, v21\nv_exp_f32 v16, v16")
        s.red8("v_add_f32", 20)
        e(f"v_rcp_f32 v20, v20\ns_nop 0\nv_mul_f32 v16, v16, v20\nds_write_b32 v2, v16 offset:{L_F}\ns_waitcnt lgkmcnt(0)\ns_mov_b64 exec, -1")
        s.stamp(7)
        e("s_barrier")
        s.write_stamps([1, 2, 3, 4, 5, 6, 7])
        e("s_endpgm")

    def issue(s, which, lo, hi):
        srd, vo, base = (("s[36:39]", "v14", 40), ("s[40:43]", "v15", 104))[which]
        for i in range(lo, hi):
            kg, half = i >> 1, i & 1
            r = base + 4 * i
            s.e(f"buffer_load_dwordx4 v[{r}:{r+3}], {vo}, {srd}, s{44 + (kg >> 1)} offen offset:{(kg & 1)*2048 + half*256} {s.o['kvflags']}")

    def stream(s):
        o, e = s.o, s.e
        e("L_stream:")
        e("s_sub_u32 s30, s30, 4")
        if o["rot"]:
            e("s_lshr_b32 s52, s2, 3\ns_add_u32 s52, s52, s30\ns_and_b32 s52, s52, 7\ns_lshr_b32 s54, s2, 6")
        else:
            e("s_mov_b32 s52, s30\ns_mov_b32 s54, 0")
        e("s_lshl_b32 s52, s52, 14\ns_lshl_b32 s53, s34, 22\ns_add_u32 s52, s52, s53\ns_lshl_b32 s53, s33, 17\ns_add_u32 s52, s52, s53")
        e(f"s_add_u32 s52, s52, {6144*512}")
        for i in range(4):
            e(f"s_add_u32 s53, s54, {i}\ns_and_b32 s53, s53, 3\ns_lshl_b32 s53, s53, 12\ns_add_u32 s{44+i}, s52, s53")
        e("v_lshrrev_b32 v2, 4, v1\nv_and_b32 v3, 3, v1\nv_lshlrev_b32 v3, 4, v3\nv_lshl_add_u32 v3, v2, 6, v3\nv_bfe_u32 v4, v1, 2, 2\nv_lshl_add_u32 v14, v4, 9, v3")
        e("v_and_b32 v5, 15, v1\nv_lshlrev_b32 v5, 4, v5\nv_lshl_add_u32 v15, v2, 9, v5")
        e("s_waitcnt lgkmcnt(0)")
        s.srd(36, 6, 0x8000000)
        s.srd(40, 8, 0x8000000)
        s.issue(0, 0, 4)
        e("s_barrier")
        s.issue(0, 4, 16)
        s.srd(48, 28, 0x20000000)
        e("s_cmp_ge_u32 s30, 4\ns_cbranch_scc1 L_late1\ns_setprio 2")
        s.issue(1, 0, 16)
        e("s_setprio 3\nL_late1:")
        e("v_bfe_u32 v4, v1, 3, 1\nv_lshl_add_u32 v32, v4, 9, v3")
        e("v_and_b32 v4, 1, v1\nv_lshlrev_b32 v4, 4, v4\nv_mov_b32 v5, 0xffff\nv_lshlrev_b32 v5, v4, v5\nv_bfe_u32 v4, v1, 1, 2")
        for r in range(4):
            e(f"v_cmp_eq_u32 vcc, {r}, v4\ns_nop 1\nv_cndmask_b32 v{10+r}, 0, v5, vcc")
        e(f"s_mov_b32 s61, {fbits(CSC)}\nv_mov_b32 v33, 0")
        l = s.spin_head("qw")
        e(f"ds_read_b32 v34, v33 offset:{L_QFLAG}\ns_waitcnt lgkmcnt(0)\nv_cmp_ne_u32 vcc, 1, v34\ns_cbranch_vccz L_qok\ns_sleep 2")
        s.spin_tail(l, "s_branch {}")
        e("L_qok:")
        e(f"ds_read_b128 v[2:5], v32 offset:{L_Q}\nds_read_b128 v[6:9], v32 offset:{L_Q+256}")
        e("s_cmp_ge_u32 s30, 4\ns_cbranch_scc1 L_late2\ns_waitcnt vmcnt(16)\ns_branch L_k\nL_late2:\ns_waitcnt vmcnt(0)\nL_k:\ns_waitcnt lgkmcnt(0)")
        def C(kg): return 16 if kg == 0 else 40 + 8 * (kg - 1)
        for kg in range(8):
            k = 40 + 8 * kg; c = C(kg)
            e(f"v_mfma_f32_16x16x32_bf16 v[{c}:{c+3}], v[{k}:{k+3}], v[2:5], 0")
            e(f"v_mfma_f32_16x16x32_bf16 v[{c}:{c+3}], v[{k+4}:{k+7}], v[6:9], v[{c}:{c+3}]")
        e("s_nop 1")
        for kg in range(8):
            e(f"v_mov_b32_dpp v{24+kg}, v{C(kg)} quad_perm:[0,0,0,0] row_mask:0xf bank_mask:0xf")
        for r in range(1, 4):
            for kg in range(8):
                e(f"v_add_f32_dpp v{24+kg}, v{C(kg)+r}, v{24+kg} quad_perm:[{r},{r},{r},{r}] row_mask:0xf bank_mask:0xf")
        for kg in range(8): e(f"v_cvt_pk_bf16_f32 v{24+kg}, v{24+kg}, v{24+kg}")
        for kg in range(8): e(f"v_and_b32 v{24+kg}, 0xffff0000, v{24+kg}")
        e("v_max3_f32 v32, v24, v25, v26\nv_max3_f32 v32, v32, v27, v28\nv_max3_f32 v32, v32, v29, v30\nv_max_f32 v32, v32, v31")
        s.xrow("v_max_f32", 32, 34)
        e("v_mul_f32 v32, s61, v32")
        for kg in range(8): e(f"v_fma_f32 v{24+kg}, v{24+kg}, s61, -v32")
        for kg in range(8): e(f"v_exp_f32 v{24+kg}, v{24+kg}")
        e("v_add_f32 v35, v24, v25\nv_add_f32 v36, v26, v27\nv_add_f32 v37, v28, v29\nv_add_f32 v38, v30, v31\nv_add_f32 v35, v35, v36\nv_add_f32 v37, v37, v38\nv_add_f32 v35, v35, v37")
        s.xrow("v_add_f32", 35, 34)
        e(f"v_and_b32 v36, 8, v1\nv_lshlrev_b32 v36, 2, v36\ns_lshl_b32 s53, s30, 2\nv_add_u32 v36, s53, v36\nv_mov_b32 v37, 1")
        e(f"s_mov_b64 exec, 0x101\nds_write_b32 v36, v32 offset:{L_M}\nds_write_b32 v36, v35 offset:{L_L}\ns_mov_b64 exec, 1\nds_add_u32 v33, v37 offset:{L_SCNT}\ns_mov_b64 exec, -1")
        e("s_cmp_lt_u32 s30, 4\ns_cbranch_scc1 L_early3\ns_setprio 0")
        s.issue(1, 0, 16)
        e("s_setprio 3\nL_early3:")
        for kg in range(8): e(f"v_cvt_pk_bf16_f32 v{24+kg}, v{24+kg}, v{24+kg}")
        for kg in range(8):
            for r in range(4): e(f"v_and_b32 v{40+4*kg+r}, v{24+kg}, v{10+r}")
        e(f"s_lshl_b32 s53, s30, 11\nv_lshlrev_b32 v32, 4, v1\nv_add_u32 v33, s53, v32")
        for kg in range(8):
            a = 40 + 4 * kg; v = 104 + 8 * kg
            e(f"s_waitcnt vmcnt({14-2*kg})")
            e(f"v_mfma_f32_16x16x32_bf16 v[16:19], v[{a}:{a+3}], v[{v}:{v+3}], {'0' if kg == 0 else 'v[16:19]'}")
            e(f"v_mfma_f32_16x16x32_bf16 v[20:23], v[{a}:{a+3}], v[{v+4}:{v+7}], {'0' if kg == 0 else 'v[20:23]'}")
        s.stamp(8)
        e(f"s_nop 6\nds_write_b128 v33, v[16:19] offset:{L_OBUF}\nds_write_b128 v33, v[20:23] offset:{L_OBUF+1024}")
        e("s_waitcnt lgkmcnt(0)\ns_barrier")
        s.stamp(9)
        e("s_cmp_ge_u32 s30, 4\ns_cbranch_scc1 L_nored")
        e(f"s_and_b32 s53, s30, 1\ns_lshl_b32 s53, s53, 5\nv_mov_b32 v2, s53\ns_lshl_b32 s53, s30, 9\nv_add_u32 v3, s53, v32")
        e("s_mov_b32 exec_hi, 0")
        e(f"ds_read_b128 v[24:27], v2 offset:{L_F}\nds_read_b128 v[28:31], v2 offset:{L_F+16}")
        for w in range(8):
            e(f"ds_read_b128 v[{104+4*w}:{107+4*w}], v3 offset:{L_OBUF + 2048*w}")
        e(f"s_lshl_b32 s54, s35, 11\ns_add_u32 s54, s54, {W_O}")
        for w in range(8):
            e(f"s_waitcnt lgkmcnt({7-w})")
            f = 24 + (w & ~1); sel = w & 1
            for hh in range(2):
                a = 104 + 4 * w + 2 * hh
                if w == 0:
                    e(f"v_pk_mul_f32 v[{16+2*hh}:{17+2*hh}], v[{a}:{a+1}], v[{f}:{f+1}] op_sel:[0,{sel}] op_sel_hi:[1,{sel}]")
                else:
                    e(f"v_pk_fma_f32 v[{16+2*hh}:{17+2*hh}], v[{a}:{a+1}], v[{f}:{f+1}], v[{16+2*hh}:{17+2*hh}] op_sel:[0,{sel},0] op_sel_hi:[1,{sel},1]")
        e("v_min_u32 v16, -2, v16\nv_min_u32 v17, -2, v17\nv_min_u32 v18, -2, v18\nv_min_u32 v19, -2, v19")
        e("buffer_store_dwordx4 v[16:19], v3, s[48:51], s54 offen sc1\ns_mov_b64 exec, -1")
        e("L_nored:")
        e("v_lshrrev_b32 v4, 4, v1\nv_bfe_u32 v5, v1, 1, 1\nv_bfe_u32 v6, v1, 3, 1\nv_and_b32 v7, 1, v4")
        e("v_lshl_add_u32 v6, v7, 1, v6\nv_lshl_add_u32 v6, v5, 2, v6\nv_add_u32 v6, s30, v6\nv_and_b32 v6, 7, v6\nv_lshlrev_b32 v6, 4, v6")
        e("v_lshl_add_u32 v6, v4, 10, v6\nv_lshl_add_u32 v6, v5, 15, v6\nv_bfe_u32 v7, v1, 2, 2\nv_lshl_add_u32 v6, v7, 7, v6\nv_and_b32 v7, 1, v1\nv_lshl_add_u32 v6, v7, 3, v6")
        e(f"v_add_u32 v6, {L_WO}, v6")
        for m in range(8):
            e(f"ds_read_b64_tr_b16 v[{72+4*m}:{73+4*m}], v6 offset:{4096*m}\nds_read_b64_tr_b16 v[{74+4*m}:{75+4*m}], v6 offset:{4096*m+512}")
        e("v_and_b32 v5, 15, v1\nv_lshlrev_b32 v7, 4, v5\nv_lshl_add_u32 v14, v4, 12, v7")
        e("v_and_b32 v8, 1, v4\nv_lshlrev_b32 v8, 1, v8\nv_lshrrev_b32 v9, 1, v4\nv_or_b32 v8, v8, v9")
        e("s_bfe_u32 s53, s30, 0x10001\ns_lshl_b32 s53, s53, 9\ns_lshr_b32 s54, s30, 2\ns_lshl_b32 s54, s54, 8\ns_add_u32 s53, s53, s54\ns_and_b32 s54, s30, 1\ns_lshl_b32 s54, s54, 3\ns_add_u32 s53, s53, s54")
        e("v_lshl_add_u32 v15, v8, 1, v7\nv_add_u32 v15, s53, v15")
        e("v_and_b32 v9, 1, v1\nv_lshlrev_b32 v9, 9, v9\nv_lshl_add_u32 v32, v4, 4, v9")
        e("s_mul_i32 s53, s30, 56\nv_lshl_add_u32 v33, v5, 2, v8\nv_add_u32 v33, s53, v33\nv_lshlrev_b32 v34, 1, v33\nv_lshlrev_b32 v33, 2, v33")
        e(f"ds_read_u16 v34, v34 offset:{L_XROW}")
        e("s_and_b32 s53, s30, 3\ns_mul_i32 s53, s53, 896\nv_lshl_add_u32 v9, v1, 1, s53")
        for k, base in enumerate((104, 112, 120)):
            for i in range(7):
                e(f"ds_read_u16 v{base+i}, v9 offset:{L_PAR + 4096*k + 128*i}")
        e("v_lshrrev_b32 v35, 3, v1\nv_lshlrev_b32 v35, 14, v35\nv_and_b32 v9, 7, v1\nv_lshl_add_u32 v35, v9, 2, v35")
        e(f"s_lshl_b32 s55, s34, 14\ns_lshl_b32 s53, s30, 8\ns_add_u32 s55, s55, s53\ns_add_u32 s55, s55, {W_O}")
        e(f"s_lshl_b32 s56, s32, 17\ns_add_u32 s56, s56, {W_OUT}\ns_and_b32 s54, s35, 63\ns_lshl_b32 s54, s54, 8\ns_add_u32 s57, s56, s54\ns_lshl_b32 s54, s30, 5\ns_add_u32 s57, s57, s54")
        e("s_lshl_b32 s54, s31, 14\ns_add_u32 s56, s56, s54\ns_add_u32 s56, s56, s53")
        e("s_waitcnt lgkmcnt(0)")
        for base in (104, 112, 120):
            for i in range(7): e(f"v_lshlrev_b32 v{base+i}, 16, v{base+i}")
        e(f"v_lshlrev_b32 v34, 16, v34\nv_mov_b32 v128, {fbits(K1)}\nv_mov_b32 v129, {fbits(K0)}")
        def poll(tag, so, sl, first):
            f = s.lab(tag + "f")
            if first: e(f"s_sleep {first}")
            e(f"s_mov_b32 s60, 0\ns_branch {f}")
            l = s.lab(tag); e(f"{l}:\ns_sleep {sl}\n{f}:")
            e(f"buffer_load_dwordx4 v[16:19], v14, s[48:51], {so} offen sc1\nbuffer_load_dwordx4 v[20:23], v14, s[48:51], {so} offen offset:2048 sc1")
            e("s_waitcnt vmcnt(0)\nv_max3_u32 v24, v16, v17, v18\nv_max3_u32 v25, v19, v20, v21\nv_max3_u32 v24, v24, v22, v23\nv_max_u32 v24, v24, v25\nv_cmp_eq_u32 vcc, -1, v24")
            s.spin_tail(l, "s_cbranch_vccnz {}")
            e("v_pk_add_f32 v[16:17], v[16:17], v[20:21]\nv_pk_add_f32 v[18:19], v[18:19], v[22:23]")
            s.rscatter(16)
        poll("h1", "s55", o["sl1"], o["first1"])
        s.stamp(10)
        e(f"v_cvt_pk_bf16_f32 v16, v16, v16\nds_write_b16 v15, v16 offset:{L_OBF}\ns_waitcnt lgkmcnt(0)\ns_barrier")
        s.stamp(11)
        e("s_cmp_eq_u32 s30, 7\ns_cbranch_scc1 L_nowo")
        for m in range(8):
            e(f"ds_read_b128 v[{40+4*m}:{43+4*m}], v32 offset:{L_OBF + 64*m}")
        for m in range(8):
            e(f"s_waitcnt lgkmcnt({7-m})\nv_mfma_f32_16x16x32_bf16 v[16:19], v[{40+4*m}:{43+4*m}], v[{72+4*m}:{75+4*m}], {'0' if m == 0 else 'v[16:19]'}")
        e("s_nop 7\nv_add_f32_dpp v20, v17, v16 row_shl:8 row_mask:0xf bank_mask:0x3\nv_add_f32_dpp v20, v16, v17 row_shr:8 row_mask:0xf bank_mask:0xc")
        e("v_min_u32 v20, -2, v20\nbuffer_store_dword v20, v35, s[48:51], s57 offen sc1")
        e("L_nowo:")
        s.stamp(12)
        e("s_mov_b32 exec_lo, 0x3fff3fff\ns_mov_b32 exec_hi, 0x3fff3fff")
        poll("h2", "s56", o["sl2"], o["first2"])
        s.stamp(13)
        s.bfround(16)
        e("v_add_f32 v16, v16, v34"); s.bfround(16)
        e(f"ds_write_b32 v33, v16 offset:{L_H}\ns_mov_b64 exec, -1")
        e("v_lshlrev_b32 v2, 2, v1\nv_mov_b32 v3, 0\ns_and_b32 s53, s35, 63\ns_mul_i32 s58, s53, 28\ns_lshr_b32 s54, s30, 2\ns_lshl_b32 s54, s54, 4\ns_add_u32 s54, s54, s58\nv_mov_b32 v4, s54")
        e(f"s_mov_b32 s61, {fbits(1.0/448)}\ns_mov_b32 s62, {fbits(1e-5)}")
        e("s_waitcnt lgkmcnt(0)\ns_barrier")
        e(f"ds_read_b32 v31, v3 offset:{L_H}")
        for i in range(3):
            e(f"ds_read2st64_b32 v[{24+2*i}:{25+2*i}], v2 offset0:{L_H//256 + 2*i} offset1:{L_H//256 + 2*i+1}")
        e(f"ds_read_b32 v30, v2 offset:{L_H + 6*256}")
        e(f"v_add_u32 v4, {L_H}, v4\nds_read2_b32 v[36:37], v4 offset0:0 offset1:1\nds_read2_b32 v[38:39], v4 offset0:2 offset1:3")
        e("s_waitcnt lgkmcnt(2)")
        for i in range(7): e(f"v_sub_f32 v{24+i}, v{24+i}, v31")
        e("v_add_f32 v6, v24, v25\nv_mul_f32 v7, v24, v24\nv_fmac_f32 v7, v25, v25")
        for i in range(2, 7): e(f"v_add_f32 v6, v6, v{24+i}\nv_fmac_f32 v7, v{24+i}, v{24+i}")
        s.red16("v_add_f32", [6, 7])
        for sw in ("v_permlane16_swap_b32", "v_permlane32_swap_b32"):
            e(f"v_mov_b32 v8, v6\nv_mov_b32 v9, v7\ns_nop 0\n{sw} v6, v8\n{sw} v7, v9\nv_add_f32 v6, v6, v8\nv_add_f32 v7, v7, v9")
        e("v_mul_f32 v6, s61, v6\nv_mul_f32 v7, s61, v7\nv_fma_f32 v7, -v6, v6, v7\nv_max_f32 v7, 0, v7\nv_add_f32 v6, v31, v6")
        e("v_cvt_pk_bf16_f32 v8, v6, v7\nv_and_b32 v9, 0xffff0000, v8\nv_lshlrev_b32 v8, 16, v8")
        e("v_add_f32 v9, s62, v9"); s.bfround(9)
        e("v_sqrt_f32 v9, v9\nv_sub_f32 v6, v6, v8"); s.bfround(9)
        e("v_rcp_f32 v10, v9\ns_waitcnt lgkmcnt(0)")
        e("v_pk_add_f32 v[36:37], v[36:37], v[8:9] op_sel_hi:[1,0] neg_lo:[0,1] neg_hi:[0,1]\nv_pk_add_f32 v[38:39], v[38:39], v[8:9] op_sel_hi:[1,0] neg_lo:[0,1] neg_hi:[0,1]")
        e("v_mul_f32 v6, v6, v10\nv_mul_f32 v7, v7, v10\nv_mul_f32 v7, v7, v10")
        e("v_cvt_pk_bf16_f32 v12, v6, v7\nv_and_b32 v13, 0xffff0000, v12\nv_lshlrev_b32 v12, 16, v12")
        e("v_add_f32 v13, s62, v13"); s.bfround(13)
        def rnd4():
            e("v_cvt_pk_bf16_f32 v36, v36, v37\nv_cvt_pk_bf16_f32 v38, v38, v39\nv_and_b32 v37, 0xffff0000, v36\nv_and_b32 v39, 0xffff0000, v38\nv_lshlrev_b32 v36, 16, v36\nv_lshlrev_b32 v38, 16, v38")
        e("v_sqrt_f32 v13, v13"); rnd4(); s.bfround(13)
        e("v_pk_mul_f32 v[36:37], v[36:37], v[10:11] op_sel_hi:[1,0]\nv_pk_mul_f32 v[38:39], v[38:39], v[10:11] op_sel_hi:[1,0]\nv_rcp_f32 v10, v13")
        rnd4()
        e("v_pk_add_f32 v[36:37], v[36:37], v[12:13] op_sel_hi:[1,0] neg_lo:[0,1] neg_hi:[0,1]\nv_pk_add_f32 v[38:39], v[38:39], v[12:13] op_sel_hi:[1,0] neg_lo:[0,1] neg_hi:[0,1]")
        rnd4()
        e("v_pk_mul_f32 v[36:37], v[36:37], v[10:11] op_sel_hi:[1,0]\nv_pk_mul_f32 v[38:39], v[38:39], v[10:11] op_sel_hi:[1,0]")
        rnd4()
        s.stamp(14)
        e("v_mov_b32 v16, 0\nv_mov_b32 v17, 0\nv_mov_b32 v18, 0\nv_mov_b32 v19, 0")
        def pk_stage(items):
            def sel(i): return i & 1
            def pr(b, i): return f"v[{b + (i & ~1)}:{b + (i & ~1) + 1}]"
            for T, A, i, t in items:
                x = sel(i); e(f"v_pk_fma_f32 v[{t}:{t+1}], v[{T}:{T+1}], {pr(104,i)}, {pr(112,i)} op_sel:[0,{x},{x}] op_sel_hi:[1,{x},{x}]")
            for T, A, i, t in items: e(f"v_pk_mul_f32 v[{t+2}:{t+3}], v[{t}:{t+1}], v[{t}:{t+1}]")
            for T, A, i, t in items: e(f"v_pk_fma_f32 v[{t+2}:{t+3}], v[{t+2}:{t+3}], v[128:129], v[128:129] op_sel:[0,0,1] op_sel_hi:[1,0,1]")
            for T, A, i, t in items: e(f"v_pk_mul_f32 v[{t+2}:{t+3}], v[{t+2}:{t+3}], v[{t}:{t+1}]")
            for T, A, i, t in items: e(f"v_exp_f32 v{t+2}, v{t+2}\nv_exp_f32 v{t+3}, v{t+3}")
            for T, A, i, t in items:
                x = sel(i); e(f"v_pk_mul_f32 v[{t}:{t+1}], v[{t}:{t+1}], {pr(120,i)} op_sel:[0,{x}] op_sel_hi:[1,{x}]")
            for T, A, i, t in items: e(f"v_pk_add_f32 v[{t+2}:{t+3}], v[{t+2}:{t+3}], 1.0 op_sel_hi:[1,0]")
            for T, A, i, t in items: e(f"v_rcp_f32 v{t+2}, v{t+2}\nv_rcp_f32 v{t+3}, v{t+3}")
            if len(items) == 1: e("s_nop 0")
            for T, A, i, t in items: e(f"v_pk_fma_f32 v[{A}:{A+1}], v[{t}:{t+1}], v[{t+2}:{t+3}], v[{A}:{A+1}]")
        def sc_stage(items):
            for T, A, i, t in items: e(f"v_fma_f32 v{t}, v{T}, v{104+i}, v{112+i}")
            for T, A, i, t in items: e(f"v_mul_f32 v{t+1}, v{t}, v{t}")
            for T, A, i, t in items: e(f"v_fma_f32 v{t+1}, v{t+1}, v128, v129")
            for T, A, i, t in items: e(f"v_mul_f32 v{t+1}, v{t+1}, v{t}")
            for T, A, i, t in items: e(f"v_exp_f32 v{t+1}, v{t+1}")
            for T, A, i, t in items: e(f"v_mul_f32 v{t}, v{t}, v{120+i}")
            for T, A, i, t in items: e(f"v_add_f32 v{t+1}, 1.0, v{t+1}")
            for T, A, i, t in items: e(f"v_rcp_f32 v{t+1}, v{t+1}")
            for T, A, i, t in items: e(f"v_fmac_f32 v{A}, v{t}, v{t+1}")
        pk_stage([(36, 16, i, 40 + 4 * i) for i in range(7)])
        e("s_cmp_ge_u32 s30, 4\ns_cbranch_scc1 L_mlp1")
        pk_stage([(38, 18, i, 40 + 4 * i) for i in range(7)])
        e("s_branch L_mlp2\nL_mlp1:")
        sc_stage([(38, 18, i, 40 + 2 * i) for i in range(7)])
        e("L_mlp2:")
        s.rscatter(16)
        s.red16("v_add_f32", [16])
        e("v_lshrrev_b32 v4, 4, v1\nv_and_b32 v8, 1, v4\nv_lshlrev_b32 v8, 1, v8\nv_lshrrev_b32 v9, 1, v4\nv_or_b32 v8, v8, v9")
        e("s_and_b32 s53, s30, 3\ns_lshl_b32 s53, s53, 5\ns_lshr_b32 s54, s30, 2\ns_lshl_b32 s54, s54, 4\ns_add_u32 s53, s53, s54\nv_lshl_add_u32 v8, v8, 2, s53")
        e(f"s_mov_b32 exec_lo, 0x00010001\ns_mov_b32 exec_hi, 0x00010001\nds_write_b32 v8, v16 offset:{L_PART}\ns_mov_b64 exec, -1\ns_waitcnt lgkmcnt(0)\ns_barrier")
        e("s_cmp_lg_u32 s30, 0\ns_cbranch_scc1 L_fin")
        e("s_mov_b64 exec, 0x7f")
        e(f"v_add_u32 v5, {L_PART}, v2\nds_read2_b32 v[16:17], v5 offset0:0 offset1:8\nds_read2_b32 v[18:19], v5 offset0:16 offset1:24")
        e(f"v_add_u32 v4, s58, v2\nds_read_b32 v20, v4 offset:{L_H}\nds_read_b32 v21, v3 offset:{L_B2}")
        s.srd(36, 24, 3584)
        e("s_mul_i32 s53, s32, 896\ns_lshr_b32 s54, s58, 1\ns_add_u32 s53, s53, s54\nv_lshlrev_b32 v5, 1, v1")
        e("s_waitcnt lgkmcnt(0)\nv_add_f32 v16, v16, v17\nv_add_f32 v18, v18, v19\nv_add_f32 v16, v16, v18")
        s.bfround(16)
        e("v_add_f32 v16, v16, v21"); s.bfround(16)
        e("v_add_f32 v16, v16, v20\nv_cvt_pk_bf16_f32 v16, v16, v16\nbuffer_store_short v16, v5, s[36:39], s53 offen")
        s.stamp(15)
        s.write_stamps([0, 9, 10, 11, 12, 13, 14, 15])
        e("s_endpgm\nL_fin:")
        if o["stamps"]:
            e("s_cmp_lg_u32 s30, 7\ns_cbranch_scc1 L_end")
            s.write_stamps([8])

def main():
    import json
    out = sys.argv[1]
    opts = json.loads(sys.argv[2]) if len(sys.argv) > 2 else {}
    open(out, "w").write(G(**opts).gen())
if __name__ == "__main__":
    main()
```

```python
import sys, math
NAME = "sequential_preLN__sliding_block_cached__mixer_token_mlp__decode_kernel"

L_QFLAG, L_SCNT = 0x0, 0x4
L_B2 = 0x8
L_M, L_L, L_F = 0x40, 0x80, 0xC0
L_Q = 0x100
L_OBF = 0x500
L_H = 0x900
L_XN = 0x1000
L_PART = 0x1E00
L_PAR = 0x2000
L_WQ = 0x5000
L_XROW = 0x8800
L_OBUF = 0x9000
L_WO = 0xD000
L_END = 0x1D000
W_Q = 0x0
W_ST = 0x8000
W_O = 0x10000
W_OUT = 0x100000
W_STAMP = 0x10000000
SPIN = 200000

CSC = math.log2(math.e) / 16.0
K0 = -2.0 * math.log2(math.e) * math.sqrt(2.0 / math.pi)
K1 = K0 * 0.044715
import struct
def fbits(x): return "0x%08x" % struct.unpack("<I", struct.pack("<f", x))[0]

class G:
    def __init__(s, **o):
        s.L = []
        s.o = dict(kvflags="nt", wflags="", map_="g", stamps=False, rot=True, sl_bar=8, sl_q=6, sl1=4, sl2=4, first1=0, first2=0)
        s.o.update(o)
        s.uid = 0
    def e(s, t):
        for l in t.split("\n"):
            l = l.strip()
            if l: s.L.append(("" if l.endswith(":") else "    ") + l)
    def lab(s, p):
        s.uid += 1
        return f"L_{p}_{s.uid}"
    def stamp(s, i):
        if s.o["stamps"]:
            s.e(f"s_memrealtime s[{64+2*i}:{65+2*i}]")
    def write_stamps(s, idxs):
        if not s.o["stamps"]: return
        if s.o["stamps"] == "amp":
            k = s.o["amp"]
            if k in idxs and k != 0:
                l = s.lab("amp")
                s.e(f"s_cmp_lg_u32 s2, {s.o.get('ampwg', 0)}\ns_cbranch_scc1 {l}_o\ns_waitcnt lgkmcnt(0)\ns_sub_u32 s63, s{64+2*k}, s64\ns_mul_i32 s63, s63, 20\ns_memrealtime s[66:67]\ns_waitcnt lgkmcnt(0)\ns_mov_b32 s60, s66")
                s.e(f"{l}:\ns_sleep 4\ns_memrealtime s[66:67]\ns_waitcnt lgkmcnt(0)\ns_sub_u32 s62, s66, s60\ns_cmp_lt_u32 s62, s63\ns_cbranch_scc1 {l}\n{l}_o:")
            return
        s.e("s_waitcnt lgkmcnt(0)\ns_mov_b64 exec, 1\nv_mov_b32 v2, 0")
        if s.o["stamps"] == "dbg":
            s.srd(44, 26, 256)
            for i in idxs:
                r = 64 + 2 * i
                if i == 0:
                    s.e(f"s_not_b32 s63, s64\nv_mov_b32 v4, s63\nbuffer_atomic_umax v4, v2, s[44:47], 0 offen offset:4 sc1\ns_nop 1")
                if i == 1: continue
                d = 0 if i == 0 else i
                if i == 0: continue
                s.e(f"v_mov_b32 v4, s{r}\nbuffer_atomic_umax v4, v2, s[44:47], 0 offen offset:{4*d} sc1\ns_nop 1")
            return
        s.e(f"s_lshl_b32 s63, s2, 7\ns_add_u32 s63, s63, {W_STAMP}")
        for i in idxs:
            r = 64 + 2 * i
            s.e(f"v_mov_b32 v4, s{r}\nv_mov_b32 v5, s{r+1}\nbuffer_store_dwordx2 v[4:5], v2, s[48:51], s63 offen offset:{8*i}\ns_nop 1")
    def srd(s, d, b, n):
        s.e(f"s_mov_b32 s{d}, s{b}\ns_mov_b32 s{d+1}, s{b+1}\ns_mov_b32 s{d+2}, {n}\ns_mov_b32 s{d+3}, 0x20000")
    def spin_head(s, p):
        l = s.lab(p); s.e(f"s_mov_b32 s60, 0\n{l}:"); return l
    def spin_tail(s, l, cond):
        o = s.lab("out")
        s.e(f"s_add_u32 s60, s60, 1\ns_cmp_gt_u32 s60, {SPIN}\ns_cbranch_scc1 {o}")
        s.e(cond.format(l))
        s.e(f"{o}:")
    def red8(s, op, r):
        for c in ("quad_perm:[1,0,3,2]", "quad_perm:[2,3,0,1]", "row_half_mirror"):
            s.e(f"s_nop 1\n{op}_dpp v{r}, v{r}, v{r} {c} row_mask:0xf bank_mask:0xf")
    def red16(s, op, regs):
        for c in ("quad_perm:[1,0,3,2]", "quad_perm:[2,3,0,1]", "row_half_mirror", "row_mirror"):
            s.e("s_nop 1" if len(regs) == 1 else "s_nop 0")
            for r in regs:
                s.e(f"{op}_dpp v{r}, v{r}, v{r} {c} row_mask:0xf bank_mask:0xf")
    def xrow(s, op, r, t):
        for sw in ("v_permlane16_swap_b32", "v_permlane32_swap_b32"):
            s.e(f"v_mov_b32 v{t}, v{r}\ns_nop 1\n{sw} v{r}, v{t}\ns_nop 0\n{op} v{r}, v{r}, v{t}")
    def rscatter(s, x):
        s.e(f"s_nop 1\nv_permlane32_swap_b32 v{x}, v{x+1}\nv_permlane32_swap_b32 v{x+2}, v{x+3}\ns_nop 0")
        s.e(f"v_add_f32 v{x}, v{x}, v{x+1}\nv_add_f32 v{x+2}, v{x+2}, v{x+3}\ns_nop 1")
        s.e(f"v_permlane16_swap_b32 v{x}, v{x+2}\ns_nop 0\nv_add_f32 v{x}, v{x}, v{x+2}")
    def bfround(s, r):
        s.e(f"v_cvt_pk_bf16_f32 v{r}, v{r}, v{r}\nv_and_b32 v{r}, 0xffff0000, v{r}")

    def gen(s):
        o, e = s.o, s.e
        s.L.append(f"; @launch grid=(256,1,1) block=(768,1,1) lds={L_END}")
        s.L.append('.amdgcn_target "amdgcn-amd-amdhsa--gfx950"\n.text')
        s.L.append(f".globl {NAME}\n.p2align 8\n.type {NAME},@function\n{NAME}:")
        e("s_cmp_ge_u32 s2, 256\ns_cbranch_scc1 L_end")
        s.stamp(0)
        e("s_load_dwordx16 s[4:19], s[0:1], 0\ns_load_dwordx8 s[20:27], s[0:1], 64\ns_load_dwordx2 s[28:29], s[0:1], 96")
        e("s_setprio 3")
        e("v_lshrrev_b32 v2, 6, v0\nv_and_b32 v1, 63, v0\ns_nop 0\nv_readfirstlane_b32 s30, v2")
        if o["map_"] == "g":
            e("s_and_b32 s31, s2, 7\ns_lshr_b32 s33, s2, 3\ns_lshr_b32 s32, s33, 3\ns_and_b32 s33, s33, 7")
        else:
            e("s_and_b32 s33, s2, 7\ns_lshr_b32 s31, s2, 3\ns_lshr_b32 s32, s31, 3\ns_and_b32 s31, s31, 7")
        e("s_lshl_b32 s34, s32, 3\ns_add_u32 s34, s34, s31\ns_lshl_b32 s35, s34, 3\ns_add_u32 s35, s35, s33")
        e("s_cmp_ge_u32 s30, 4\ns_cbranch_scc1 L_stream\ns_cmp_eq_u32 s30, 0\ns_cbranch_scc1 L_qwave")
        s.prefetch()
        s.qwave()
        s.stream()
        e("L_end:\ns_endpgm")
        s.L.append(f""".section .rodata,"a"
.p2align 6
.amdhsa_kernel {NAME}
  .amdhsa_next_free_vgpr 168
  .amdhsa_next_free_sgpr 96
  .amdhsa_accum_offset 168
  .amdhsa_group_segment_fixed_size 0
  .amdhsa_kernarg_size 104
  .amdhsa_user_sgpr_count 2
  .amdhsa_user_sgpr_kernarg_segment_ptr 1
  .amdhsa_system_sgpr_workgroup_id_x 1
.end_amdhsa_kernel""")
        return "\n".join(s.L) + "\n"

    def prefetch(s):
        o, e = s.o, s.e
        wf = o["wflags"]
        e("s_setprio 1")
        e("v_lshrrev_b32 v2, 3, v1\nv_mul_u32_u24 v3, 896, v2\nv_bfe_u32 v4, v1, 4, 1\nv_and_b32 v5, 7, v1\nv_sub_u32 v5, v5, v4")
        for k in range(4):
            par, kh = k & 1, k >> 1
            e(f"v_subrev_u32 v6, {2*par+4*kh}, v5\nv_and_b32 v6, 7, v6\nv_cmp_ne_u32 s[{40+2*k}:{41+2*k}], 7, v6\nv_lshl_add_u32 v{10+k}, v6, 4, v3")
        e("v_lshlrev_b32 v14, 4, v1")
        e("s_waitcnt lgkmcnt(0)")
        s.srd(36, 12, 4096 * 896)
        e("s_mul_i32 s52, s31, 458752\ns_mul_i32 s53, s33, 112\ns_add_u32 s52, s52, s53")
        e("s_barrier")
        e("s_cmp_eq_u32 s30, 2\ns_cbranch_scc1 L_pf2\ns_cmp_eq_u32 s30, 3\ns_cbranch_scc1 L_pf3")
        for pw in range(3):
            if pw: e(f"L_pf{pw+1}:")
            s.srd(56, (16, 18, 20)[pw], 3584)
            for i in range(4):
                e(f"s_mov_b32 m0, {L_PAR + pw*4096 + i*1024}\ns_movk_i32 s53, {i*1024}\nbuffer_load_dwordx4 v14, s[56:59], s53 offen lds")
            if pw == 0:
                s.srd(56, 4, 3584)
                e(f"s_mov_b32 m0, {L_XROW}\ns_mul_i32 s53, s32, 896\nbuffer_load_dwordx4 v14, s[56:59], s53 offen lds")
            if pw == 1:
                s.srd(56, 22, 2)
                e("v_mov_b32 v15, 0\nbuffer_load_ushort v16, v15, s[56:59], 0 offen")
            for ch in range(pw, 64, 3):
                k = (ch & 1) + 2 * (ch >> 5)
                e(f"s_mov_b32 m0, {L_WO + ch*1024}\ns_add_u32 s53, s52, {ch*8*896}\ns_mov_b64 exec, s[{40+2*k}:{41+2*k}]")
                e(f"buffer_load_dwordx4 v{10+k}, s[36:39], s53 offen {wf} lds")
            e("s_mov_b64 exec, -1\ns_waitcnt vmcnt(0)")
            if pw == 1:
                e(f"v_lshlrev_b32 v16, 16, v16\nds_write_b32 v15, v16 offset:{L_B2}\ns_waitcnt lgkmcnt(0)")
            e("s_barrier\ns_endpgm")

    def qwave(s):
        o, e = s.o, s.e
        wf = o["wflags"]
        e("L_qwave:")
        e(f"v_mov_b32 v2, 0\nv_mov_b32 v3, 0\nds_write_b64 v2, v[2:3] offset:{L_QFLAG}")
        e("v_lshrrev_b32 v4, 4, v1\nv_and_b32 v5, 15, v1\nv_mul_u32_u24 v4, 896, v4\nv_mul_u32_u24 v5, 56, v5\nv_add_u32 v6, v4, v5")
        e("v_lshrrev_b32 v7, 1, v1\nv_lshlrev_b32 v7, 13, v7\nv_and_b32 v8, 1, v1\nv_lshl_add_u32 v7, v8, 4, v7")
        e("v_lshlrev_b32 v9, 4, v1")
        e("v_lshrrev_b32 v10, 4, v1\nv_lshlrev_b32 v10, 14, v10\nv_and_b32 v11, 15, v1\nv_lshl_add_u32 v10, v11, 4, v10")
        e("v_mov_b32 v12, -1\nv_mov_b32 v13, -1\nv_mov_b32 v14, -1\nv_mov_b32 v15, -1")
        e("s_waitcnt lgkmcnt(0)")
        s.srd(36, 4, 3584)
        s.srd(40, 10, 448 * 8192)
        s.srd(44, 26, 256)
        s.srd(48, 28, 0x20000000)
        e("buffer_load_dwordx4 v[16:19], v6, s[36:39], 0 offen\nbuffer_load_dwordx4 v[20:23], v6, s[36:39], 0 offen offset:16")
        e("buffer_load_dwordx4 v[24:27], v6, s[36:39], 0 offen offset:32\nbuffer_load_dwordx2 v[28:29], v6, s[36:39], 0 offen offset:48")
        e("s_lshl_b32 s54, s33, 2\ns_add_u32 s54, s54, s32\ns_lshl_b32 s52, s31, 10\ns_lshl_b32 s53, s54, 5\ns_add_u32 s52, s52, s53")
        for m in range(14):
            e(f"s_mov_b32 m0, {L_WQ + m*1024}\ns_add_u32 s53, s52, {m*32*8192}\nbuffer_load_dwordx4 v7, s[40:43], s53 offen {wf} lds")
        e(f"s_lshl_b32 s55, s31, 5\ns_add_u32 s55, s55, s54\ns_lshl_b32 s55, s55, 7")
        e(f"s_lshl_b32 s56, s34, 7\ns_lshl_b32 s53, s33, 4\ns_add_u32 s56, s56, s53\ns_add_u32 s56, s56, {W_ST}")
        e(f"s_lshl_b32 s57, s35, 11\ns_add_u32 s57, s57, {W_O}")
        e(f"s_lshl_b32 s58, s32, 17\ns_and_b32 s53, s35, 63\ns_lshl_b32 s53, s53, 8\ns_add_u32 s58, s58, s53\ns_add_u32 s58, s58, {W_OUT}\ns_add_u32 s59, s58, 65536")
        e("buffer_store_dwordx4 v[12:15], v9, s[48:51], s57 offen sc1\nbuffer_store_dwordx4 v[12:15], v9, s[48:51], s57 offen offset:1024 sc1")
        e("buffer_store_dwordx4 v[12:15], v10, s[48:51], s58 offen sc1\nbuffer_store_dwordx4 v[12:15], v10, s[48:51], s59 offen sc1")
        e("s_mov_b64 exec, 0xff\nbuffer_store_dwordx4 v[12:15], v9, s[48:51], s55 offen sc1")
        e("s_mov_b64 exec, 1\nbuffer_store_dwordx4 v[12:15], v9, s[48:51], s56 offen sc1\ns_mov_b64 exec, -1")
        e("s_barrier")
        e("s_waitcnt vmcnt(20)")
        s.stamp(1)
        for k in range(14):
            e(f"v_lshlrev_b32 v{32+2*k}, 16, v{16+k}\nv_and_b32 v{33+2*k}, 0xffff0000, v{16+k}")
        e("v_mov_b32_dpp v60, v32 row_newbcast:0 row_mask:0xf bank_mask:0xf")
        e("v_mov_b32 v62, 0\nv_mov_b32 v63, 0\nv_mov_b32 v64, 0\nv_mov_b32 v65, 0")
        for k in range(14):
            e(f"v_pk_add_f32 v[66:67], v[{32+2*k}:{33+2*k}], v[60:61] op_sel_hi:[1,0] neg_lo:[0,1] neg_hi:[0,1]")
            e(f"v_pk_add_f32 v[62:63], v[62:63], v[66:67]\nv_pk_fma_f32 v[64:65], v[66:67], v[66:67], v[64:65]")
        e("v_add_f32 v62, v62, v63\nv_add_f32 v64, v64, v65")
        s.red16("v_add_f32", [62, 64])
        e(f"s_mov_b32 s61, {fbits(1.0/448)}\ns_mov_b32 s62, {fbits(1e-5)}")
        e("v_mul_f32 v62, s61, v62\nv_mul_f32 v64, s61, v64\nv_fma_f32 v64, -v62, v62, v64\nv_max_f32 v64, 0, v64\nv_add_f32 v62, v60, v62")
        s.bfround(62); s.bfround(64)
        e("v_add_f32 v64, s62, v64"); s.bfround(64)
        e("v_sqrt_f32 v64, v64\ns_nop 0"); s.bfround(64)
        e("v_rcp_f32 v64, v64")
        for k in range(14):
            a = 32 + 2 * k
            e(f"v_pk_add_f32 v[{a}:{a+1}], v[{a}:{a+1}], v[62:63] op_sel_hi:[1,0] neg_lo:[0,1] neg_hi:[0,1]")
            e(f"v_cvt_pk_bf16_f32 v66, v{a}, v{a+1}\nv_lshlrev_b32 v{a}, 16, v66\nv_and_b32 v{a+1}, 0xffff0000, v66")
            e(f"v_pk_mul_f32 v[{a}:{a+1}], v[{a}:{a+1}], v[64:65] op_sel_hi:[1,0]")
            e(f"v_cvt_pk_bf16_f32 v{16+k}, v{a}, v{a+1}")
        for k in range(7):
            e(f"ds_write_b64 v6, v[{16+2*k}:{17+2*k}] offset:{L_XN + 8*k}")
        e("v_and_b32 v2, 3, v1\nv_mul_u32_u24 v2, 896, v2\nv_lshrrev_b32 v3, 4, v1\nv_lshl_add_u32 v2, v3, 4, v2")
        e("v_and_b32 v4, 15, v1\nv_lshlrev_b32 v4, 3, v4\nv_lshl_add_u32 v4, v3, 8, v4")
        e("s_waitcnt lgkmcnt(0)")
        for m in range(14):
            e(f"ds_read_b128 v[{32+4*m}:{35+4*m}], v2 offset:{L_XN + 64*m}")
        e("s_waitcnt vmcnt(0)")
        s.stamp(2)
        e("s_lshr_b32 s53, s2, 3\ns_and_b32 s53, s53, 3\ns_lshl_b32 s53, s53, 6\nv_mov_b32 v6, 1\nv_mov_b32 v7, 0")
        e("s_mov_b64 exec, 1\nbuffer_atomic_add v6, v7, s[44:47], s53 offen sc1\ns_mov_b64 exec, -1")
        for m in range(14):
            e(f"ds_read_b64_tr_b16 v[{96+4*m}:{97+4*m}], v4 offset:{L_WQ + 1024*m}\nds_read_b64_tr_b16 v[{98+4*m}:{99+4*m}], v4 offset:{L_WQ + 1024*m + 128}")
        e("s_waitcnt lgkmcnt(0)")
        for m in range(14):
            e(f"v_mfma_f32_16x16x32_bf16 v[16:19], v[{96+4*m}:{99+4*m}], v[{32+4*m}:{35+4*m}], {'0' if m == 0 else 'v[16:19]'}")
        e("v_and_b32 v2, 3, v1\nv_lshlrev_b32 v2, 5, v2\nv_lshl_add_u32 v2, v3, 3, v2\ns_nop 7")
        e("v_cvt_pk_bf16_f32 v20, v16, v17\nv_cvt_pk_bf16_f32 v21, v18, v19\nv_min_u32 v20, -2, v20\nv_min_u32 v21, -2, v21")
        e("s_mov_b32 exec_lo, 0x000f000f\ns_mov_b32 exec_hi, 0x000f000f\nbuffer_store_dwordx2 v[20:21], v2, s[48:51], s55 offen sc1\ns_mov_b64 exec, -1")
        s.stamp(3)
        e("v_and_b32 v2, 3, v1\nv_lshlrev_b32 v2, 6, v2")
        l = s.spin_head("bar")
        e(f"s_sleep {o['sl_bar']}\nbuffer_load_dword v6, v2, s[44:47], 0 offen sc1\ns_waitcnt vmcnt(0)\nv_cmp_ne_u32 vcc, 64, v6")
        s.spin_tail(l, "s_cbranch_vccnz {}")
        s.stamp(4)
        e("v_lshrrev_b32 v2, 1, v1\nv_lshlrev_b32 v2, 7, v2\nv_and_b32 v3, 1, v1\nv_lshl_add_u32 v2, v3, 4, v2")
        e("s_lshl_b32 s53, s31, 12\ns_lshl_b32 s54, s32, 5\ns_add_u32 s53, s53, s54")
        first = s.lab("qf")
        e(f"s_mov_b32 s60, 0\ns_branch {first}")
        l = s.lab("q"); e(f"{l}:\ns_sleep {o['sl_q']}\n{first}:")
        e("buffer_load_dwordx4 v[16:19], v2, s[48:51], s53 offen sc1\ns_waitcnt vmcnt(0)")
        e("v_max3_u32 v6, v16, v17, v18\nv_max_u32 v6, v6, v19\nv_cmp_eq_u32 vcc, -1, v6")
        s.spin_tail(l, "s_cbranch_vccnz {}")
        e(f"ds_write_b128 v9, v[16:19] offset:{L_Q}\nv_mov_b32 v6, 1\ns_waitcnt lgkmcnt(0)\nds_write_b32 v7, v6 offset:{L_QFLAG}")
        s.stamp(5)
        l = s.spin_head("sc")
        e(f"s_sleep 2\nds_read_b32 v6, v7 offset:{L_SCNT}\ns_waitcnt lgkmcnt(0)\nv_cmp_ne_u32 vcc, 8, v6")
        s.spin_tail(l, "s_cbranch_vccnz {}")
        s.stamp(6)
        e(f"v_and_b32 v2, 15, v1\nv_lshlrev_b32 v2, 2, v2\nds_read_b32 v16, v2 offset:{L_M}\nds_read_b32 v17, v2 offset:{L_L}\ns_waitcnt lgkmcnt(0)")
        e("v_mov_b32 v18, v16")
        s.red8("v_max_f32", 18)
        e("v_sub_f32 v19, v16, v18\nv_exp_f32 v19, v19\ns_nop 0\nv_mul_f32 v19, v19, v17")
        s.red8("v_add_f32", 19)
        e("v_min_u32 v18, -2, v18\nv_min_u32 v19, -2, v19\nv_and_b32 v3, 8, v1")
        e("s_mov_b64 exec, 0x101\nbuffer_store_dwordx2 v[18:19], v3, s[48:51], s56 offen sc1\ns_mov_b64 exec, -1")
        e(f"v_and_b32 v4, 7, v1\nv_lshl_add_u32 v3, v4, 4, v3\ns_lshl_b32 s53, s34, 7\ns_add_u32 s53, s53, {W_ST}")
        e("s_mov_b64 exec, 0xffff")
        l = s.spin_head("st")
        e(f"s_sleep {o['sl_q']}\nbuffer_load_dwordx2 v[20:21], v3, s[48:51], s53 offen sc1\ns_waitcnt vmcnt(0)")
        e("v_max_u32 v6, v20, v21\nv_cmp_eq_u32 vcc, -1, v6")
        s.spin_tail(l, "s_cbranch_vccnz {}")
        e("v_mov_b32 v22, v20")
        s.red8("v_max_f32", 22)
        e("v_sub_f32 v20, v20, v22\nv_exp_f32 v20, v20\nv_sub_f32 v16, v16, v22\nv_mul_f32 v20, v20, v21\nv_exp_f32 v16, v16")
        s.red8("v_add_f32", 20)
        e(f"v_rcp_f32 v20, v20\ns_nop 0\nv_mul_f32 v16, v16, v20\nds_write_b32 v2, v16 offset:{L_F}\ns_waitcnt lgkmcnt(0)\ns_mov_b64 exec, -1")
        s.stamp(7)
        e("s_barrier")
        s.write_stamps([1, 2, 3, 4, 5, 6, 7])
        e("s_endpgm")

    def issue(s, which, lo, hi):
        srd, vo, base = (("s[36:39]", "v14", 40), ("s[40:43]", "v15", 104))[which]
        for i in range(lo, hi):
            kg, half = i >> 1, i & 1
            r = base + 4 * i
            s.e(f"buffer_load_dwordx4 v[{r}:{r+3}], {vo}, {srd}, s{44 + (kg >> 1)} offen offset:{(kg & 1)*2048 + half*256} {s.o['kvflags']}")

    def stream(s):
        o, e = s.o, s.e
        e("L_stream:")
        e("s_sub_u32 s30, s30, 4")
        if o["rot"]:
            e("s_lshr_b32 s52, s2, 3\ns_add_u32 s52, s52, s30\ns_and_b32 s52, s52, 7\ns_lshr_b32 s54, s2, 6")
        else:
            e("s_mov_b32 s52, s30\ns_mov_b32 s54, 0")
        e("s_lshl_b32 s52, s52, 14\ns_lshl_b32 s53, s34, 22\ns_add_u32 s52, s52, s53\ns_lshl_b32 s53, s33, 17\ns_add_u32 s52, s52, s53")
        e(f"s_add_u32 s52, s52, {6144*512}")
        for i in range(4):
            e(f"s_add_u32 s53, s54, {i}\ns_and_b32 s53, s53, 3\ns_lshl_b32 s53, s53, 12\ns_add_u32 s{44+i}, s52, s53")
        e("v_lshrrev_b32 v2, 4, v1\nv_and_b32 v3, 3, v1\nv_lshlrev_b32 v3, 4, v3\nv_lshl_add_u32 v3, v2, 6, v3\nv_bfe_u32 v4, v1, 2, 2\nv_lshl_add_u32 v14, v4, 9, v3")
        e("v_and_b32 v5, 15, v1\nv_lshlrev_b32 v5, 4, v5\nv_lshl_add_u32 v15, v2, 9, v5")
        e("s_waitcnt lgkmcnt(0)")
        s.srd(36, 6, 0x8000000)
        s.srd(40, 8, 0x8000000)
        s.issue(0, 0, 4)
        e("s_barrier")
        s.issue(0, 4, 16)
        s.srd(48, 28, 0x20000000)
        e("s_cmp_ge_u32 s30, 4\ns_cbranch_scc1 L_late1\ns_setprio 2")
        s.issue(1, 0, 16)
        e("s_setprio 3\nL_late1:")
        e("v_bfe_u32 v4, v1, 3, 1\nv_lshl_add_u32 v32, v4, 9, v3")
        e("v_and_b32 v4, 1, v1\nv_lshlrev_b32 v4, 4, v4\nv_mov_b32 v5, 0xffff\nv_lshlrev_b32 v5, v4, v5\nv_bfe_u32 v4, v1, 1, 2")
        for r in range(4):
            e(f"v_cmp_eq_u32 vcc, {r}, v4\ns_nop 1\nv_cndmask_b32 v{10+r}, 0, v5, vcc")
        e(f"s_mov_b32 s61, {fbits(CSC)}\nv_mov_b32 v33, 0")
        l = s.spin_head("qw")
        e(f"ds_read_b32 v34, v33 offset:{L_QFLAG}\ns_waitcnt lgkmcnt(0)\nv_cmp_ne_u32 vcc, 1, v34\ns_cbranch_vccz L_qok\ns_sleep 2")
        s.spin_tail(l, "s_branch {}")
        e("L_qok:")
        e(f"ds_read_b128 v[2:5], v32 offset:{L_Q}\nds_read_b128 v[6:9], v32 offset:{L_Q+256}")
        e("s_cmp_ge_u32 s30, 4\ns_cbranch_scc1 L_late2\ns_waitcnt vmcnt(16)\ns_branch L_k\nL_late2:\ns_waitcnt vmcnt(0)\nL_k:\ns_waitcnt lgkmcnt(0)")
        def C(kg): return 16 if kg == 0 else 40 + 8 * (kg - 1)
        for kg in range(8):
            k = 40 + 8 * kg; c = C(kg)
            e(f"v_mfma_f32_16x16x32_bf16 v[{c}:{c+3}], v[{k}:{k+3}], v[2:5], 0")
            e(f"v_mfma_f32_16x16x32_bf16 v[{c}:{c+3}], v[{k+4}:{k+7}], v[6:9], v[{c}:{c+3}]")
        e("s_nop 1")
        for kg in range(8):
            e(f"v_mov_b32_dpp v{24+kg}, v{C(kg)} quad_perm:[0,0,0,0] row_mask:0xf bank_mask:0xf")
        for r in range(1, 4):
            for kg in range(8):
                e(f"v_add_f32_dpp v{24+kg}, v{C(kg)+r}, v{24+kg} quad_perm:[{r},{r},{r},{r}] row_mask:0xf bank_mask:0xf")
        for kg in range(8): e(f"v_cvt_pk_bf16_f32 v{24+kg}, v{24+kg}, v{24+kg}")
        for kg in range(8): e(f"v_and_b32 v{24+kg}, 0xffff0000, v{24+kg}")
        e("v_max3_f32 v32, v24, v25, v26\nv_max3_f32 v32, v32, v27, v28\nv_max3_f32 v32, v32, v29, v30\nv_max_f32 v32, v32, v31")
        s.xrow("v_max_f32", 32, 34)
        e("v_mul_f32 v32, s61, v32")
        for kg in range(8): e(f"v_fma_f32 v{24+kg}, v{24+kg}, s61, -v32")
        for kg in range(8): e(f"v_exp_f32 v{24+kg}, v{24+kg}")
        e("v_add_f32 v35, v24, v25\nv_add_f32 v36, v26, v27\nv_add_f32 v37, v28, v29\nv_add_f32 v38, v30, v31\nv_add_f32 v35, v35, v36\nv_add_f32 v37, v37, v38\nv_add_f32 v35, v35, v37")
        s.xrow("v_add_f32", 35, 34)
        e(f"v_and_b32 v36, 8, v1\nv_lshlrev_b32 v36, 2, v36\ns_lshl_b32 s53, s30, 2\nv_add_u32 v36, s53, v36\nv_mov_b32 v37, 1")
        e(f"s_mov_b64 exec, 0x101\nds_write_b32 v36, v32 offset:{L_M}\nds_write_b32 v36, v35 offset:{L_L}\ns_mov_b64 exec, 1\nds_add_u32 v33, v37 offset:{L_SCNT}\ns_mov_b64 exec, -1")
        e("s_cmp_lt_u32 s30, 4\ns_cbranch_scc1 L_early3\ns_setprio 0")
        s.issue(1, 0, 16)
        e("s_setprio 3\nL_early3:")
        for kg in range(8): e(f"v_cvt_pk_bf16_f32 v{24+kg}, v{24+kg}, v{24+kg}")
        for kg in range(8):
            for r in range(4): e(f"v_and_b32 v{40+4*kg+r}, v{24+kg}, v{10+r}")
        e(f"s_lshl_b32 s53, s30, 11\nv_lshlrev_b32 v32, 4, v1\nv_add_u32 v33, s53, v32")
        for kg in range(8):
            a = 40 + 4 * kg; v = 104 + 8 * kg
            e(f"s_waitcnt vmcnt({14-2*kg})")
            e(f"v_mfma_f32_16x16x32_bf16 v[16:19], v[{a}:{a+3}], v[{v}:{v+3}], {'0' if kg == 0 else 'v[16:19]'}")
            e(f"v_mfma_f32_16x16x32_bf16 v[20:23], v[{a}:{a+3}], v[{v+4}:{v+7}], {'0' if kg == 0 else 'v[20:23]'}")
        s.stamp(8)
        e(f"s_nop 6\nds_write_b128 v33, v[16:19] offset:{L_OBUF}\nds_write_b128 v33, v[20:23] offset:{L_OBUF+1024}")
        e("s_waitcnt lgkmcnt(0)\ns_barrier")
        s.stamp(9)
        e("s_cmp_ge_u32 s30, 4\ns_cbranch_scc1 L_nored")
        e(f"s_and_b32 s53, s30, 1\ns_lshl_b32 s53, s53, 5\nv_mov_b32 v2, s53\ns_lshl_b32 s53, s30, 9\nv_add_u32 v3, s53, v32")
        e("s_mov_b32 exec_hi, 0")
        e(f"ds_read_b128 v[24:27], v2 offset:{L_F}\nds_read_b128 v[28:31], v2 offset:{L_F+16}")
        for w in range(8):
            e(f"ds_read_b128 v[{104+4*w}:{107+4*w}], v3 offset:{L_OBUF + 2048*w}")
        e(f"s_lshl_b32 s54, s35, 11\ns_add_u32 s54, s54, {W_O}")
        for w in range(8):
            e(f"s_waitcnt lgkmcnt({7-w})")
            f = 24 + (w & ~1); sel = w & 1
            for hh in range(2):
                a = 104 + 4 * w + 2 * hh
                if w == 0:
                    e(f"v_pk_mul_f32 v[{16+2*hh}:{17+2*hh}], v[{a}:{a+1}], v[{f}:{f+1}] op_sel:[0,{sel}] op_sel_hi:[1,{sel}]")
                else:
                    e(f"v_pk_fma_f32 v[{16+2*hh}:{17+2*hh}], v[{a}:{a+1}], v[{f}:{f+1}], v[{16+2*hh}:{17+2*hh}] op_sel:[0,{sel},0] op_sel_hi:[1,{sel},1]")
        e("v_min_u32 v16, -2, v16\nv_min_u32 v17, -2, v17\nv_min_u32 v18, -2, v18\nv_min_u32 v19, -2, v19")
        e("buffer_store_dwordx4 v[16:19], v3, s[48:51], s54 offen sc1\ns_mov_b64 exec, -1")
        e("L_nored:")
        e("v_lshrrev_b32 v4, 4, v1\nv_bfe_u32 v5, v1, 1, 1\nv_bfe_u32 v6, v1, 3, 1\nv_and_b32 v7, 1, v4")
        e("v_lshl_add_u32 v6, v7, 1, v6\nv_lshl_add_u32 v6, v5, 2, v6\nv_add_u32 v6, s30, v6\nv_and_b32 v6, 7, v6\nv_lshlrev_b32 v6, 4, v6")
        e("v_lshl_add_u32 v6, v4, 10, v6\nv_lshl_add_u32 v6, v5, 15, v6\nv_bfe_u32 v7, v1, 2, 2\nv_lshl_add_u32 v6, v7, 7, v6\nv_and_b32 v7, 1, v1\nv_lshl_add_u32 v6, v7, 3, v6")
        e(f"v_add_u32 v6, {L_WO}, v6")
        for m in range(8):
            e(f"ds_read_b64_tr_b16 v[{72+4*m}:{73+4*m}], v6 offset:{4096*m}\nds_read_b64_tr_b16 v[{74+4*m}:{75+4*m}], v6 offset:{4096*m+512}")
        e("v_and_b32 v5, 15, v1\nv_lshlrev_b32 v7, 4, v5\nv_lshl_add_u32 v14, v4, 12, v7")
        e("v_and_b32 v8, 1, v4\nv_lshlrev_b32 v8, 1, v8\nv_lshrrev_b32 v9, 1, v4\nv_or_b32 v8, v8, v9")
        e("s_bfe_u32 s53, s30, 0x10001\ns_lshl_b32 s53, s53, 9\ns_lshr_b32 s54, s30, 2\ns_lshl_b32 s54, s54, 8\ns_add_u32 s53, s53, s54\ns_and_b32 s54, s30, 1\ns_lshl_b32 s54, s54, 3\ns_add_u32 s53, s53, s54")
        e("v_lshl_add_u32 v15, v8, 1, v7\nv_add_u32 v15, s53, v15")
        e("v_and_b32 v9, 1, v1\nv_lshlrev_b32 v9, 9, v9\nv_lshl_add_u32 v32, v4, 4, v9")
        e("s_mul_i32 s53, s30, 56\nv_lshl_add_u32 v33, v5, 2, v8\nv_add_u32 v33, s53, v33\nv_lshlrev_b32 v34, 1, v33\nv_lshlrev_b32 v33, 2, v33")
        e(f"ds_read_u16 v34, v34 offset:{L_XROW}")
        e("s_and_b32 s53, s30, 3\ns_mul_i32 s53, s53, 896\nv_lshl_add_u32 v9, v1, 1, s53")
        for k, base in enumerate((104, 112, 120)):
            for i in range(7):
                e(f"ds_read_u16 v{base+i}, v9 offset:{L_PAR + 4096*k + 128*i}")
        e("v_lshrrev_b32 v35, 3, v1\nv_lshlrev_b32 v35, 14, v35\nv_and_b32 v9, 7, v1\nv_lshl_add_u32 v35, v9, 2, v35")
        e(f"s_lshl_b32 s55, s34, 14\ns_lshl_b32 s53, s30, 8\ns_add_u32 s55, s55, s53\ns_add_u32 s55, s55, {W_O}")
        e(f"s_lshl_b32 s56, s32, 17\ns_add_u32 s56, s56, {W_OUT}\ns_and_b32 s54, s35, 63\ns_lshl_b32 s54, s54, 8\ns_add_u32 s57, s56, s54\ns_lshl_b32 s54, s30, 5\ns_add_u32 s57, s57, s54")
        e("s_lshl_b32 s54, s31, 14\ns_add_u32 s56, s56, s54\ns_add_u32 s56, s56, s53")
        e("s_waitcnt lgkmcnt(0)")
        for base in (104, 112, 120):
            for i in range(7): e(f"v_lshlrev_b32 v{base+i}, 16, v{base+i}")
        e(f"v_lshlrev_b32 v34, 16, v34\nv_mov_b32 v128, {fbits(K1)}\nv_mov_b32 v129, {fbits(K0)}")
        def poll(tag, so, sl, first):
            f = s.lab(tag + "f")
            if first: e(f"s_sleep {first}")
            e(f"s_mov_b32 s60, 0\ns_branch {f}")
            l = s.lab(tag); e(f"{l}:\ns_sleep {sl}\n{f}:")
            e(f"buffer_load_dwordx4 v[16:19], v14, s[48:51], {so} offen sc1\nbuffer_load_dwordx4 v[20:23], v14, s[48:51], {so} offen offset:2048 sc1")
            e("s_waitcnt vmcnt(0)\nv_max3_u32 v24, v16, v17, v18\nv_max3_u32 v25, v19, v20, v21\nv_max3_u32 v24, v24, v22, v23\nv_max_u32 v24, v24, v25\nv_cmp_eq_u32 vcc, -1, v24")
            s.spin_tail(l, "s_cbranch_vccnz {}")
            e("v_pk_add_f32 v[16:17], v[16:17], v[20:21]\nv_pk_add_f32 v[18:19], v[18:19], v[22:23]")
            s.rscatter(16)
        poll("h1", "s55", o["sl1"], o["first1"])
        s.stamp(10)
        e(f"v_cvt_pk_bf16_f32 v16, v16, v16\nds_write_b16 v15, v16 offset:{L_OBF}\ns_waitcnt lgkmcnt(0)\ns_barrier")
        s.stamp(11)
        e("s_cmp_eq_u32 s30, 7\ns_cbranch_scc1 L_nowo")
        for m in range(8):
            e(f"ds_read_b128 v[{40+4*m}:{43+4*m}], v32 offset:{L_OBF + 64*m}")
        for m in range(8):
            e(f"s_waitcnt lgkmcnt({7-m})\nv_mfma_f32_16x16x32_bf16 v[16:19], v[{40+4*m}:{43+4*m}], v[{72+4*m}:{75+4*m}], {'0' if m == 0 else 'v[16:19]'}")
        e("s_nop 7\nv_add_f32_dpp v20, v17, v16 row_shl:8 row_mask:0xf bank_mask:0x3\nv_add_f32_dpp v20, v16, v17 row_shr:8 row_mask:0xf bank_mask:0xc")
        e("v_min_u32 v20, -2, v20\nbuffer_store_dword v20, v35, s[48:51], s57 offen sc1")
        e("L_nowo:")
        s.stamp(12)
        e("s_mov_b32 exec_lo, 0x3fff3fff\ns_mov_b32 exec_hi, 0x3fff3fff")
        poll("h2", "s56", o["sl2"], o["first2"])
        s.stamp(13)
        s.bfround(16)
        e("v_add_f32 v16, v16, v34"); s.bfround(16)
        e(f"ds_write_b32 v33, v16 offset:{L_H}\ns_mov_b64 exec, -1")
        e("v_lshlrev_b32 v2, 2, v1\nv_mov_b32 v3, 0\ns_and_b32 s53, s35, 63\ns_mul_i32 s58, s53, 28\ns_lshr_b32 s54, s30, 2\ns_lshl_b32 s54, s54, 4\ns_add_u32 s54, s54, s58\nv_mov_b32 v4, s54")
        e(f"s_mov_b32 s61, {fbits(1.0/448)}\ns_mov_b32 s62, {fbits(1e-5)}")
        e("s_waitcnt lgkmcnt(0)\ns_barrier")
        e(f"ds_read_b32 v31, v3 offset:{L_H}")
        for i in range(3):
            e(f"ds_read2st64_b32 v[{24+2*i}:{25+2*i}], v2 offset0:{L_H//256 + 2*i} offset1:{L_H//256 + 2*i+1}")
        e(f"ds_read_b32 v30, v2 offset:{L_H + 6*256}")
        e(f"v_add_u32 v4, {L_H}, v4\nds_read2_b32 v[36:37], v4 offset0:0 offset1:1\nds_read2_b32 v[38:39], v4 offset0:2 offset1:3")
        e("s_waitcnt lgkmcnt(2)")
        for i in range(7): e(f"v_sub_f32 v{24+i}, v{24+i}, v31")
        e("v_add_f32 v6, v24, v25\nv_mul_f32 v7, v24, v24\nv_fmac_f32 v7, v25, v25")
        for i in range(2, 7): e(f"v_add_f32 v6, v6, v{24+i}\nv_fmac_f32 v7, v{24+i}, v{24+i}")
        s.red16("v_add_f32", [6, 7])
        for sw in ("v_permlane16_swap_b32", "v_permlane32_swap_b32"):
            e(f"v_mov_b32 v8, v6\nv_mov_b32 v9, v7\ns_nop 0\n{sw} v6, v8\n{sw} v7, v9\nv_add_f32 v6, v6, v8\nv_add_f32 v7, v7, v9")
        e("v_mul_f32 v6, s61, v6\nv_mul_f32 v7, s61, v7\nv_fma_f32 v7, -v6, v6, v7\nv_max_f32 v7, 0, v7\nv_add_f32 v6, v31, v6")
        e("v_cvt_pk_bf16_f32 v8, v6, v7\nv_and_b32 v9, 0xffff0000, v8\nv_lshlrev_b32 v8, 16, v8")
        e("v_add_f32 v9, s62, v9"); s.bfround(9)
        e("v_sqrt_f32 v9, v9\nv_sub_f32 v6, v6, v8"); s.bfround(9)
        e("v_rcp_f32 v10, v9\ns_waitcnt lgkmcnt(0)")
        e("v_pk_add_f32 v[36:37], v[36:37], v[8:9] op_sel_hi:[1,0] neg_lo:[0,1] neg_hi:[0,1]\nv_pk_add_f32 v[38:39], v[38:39], v[8:9] op_sel_hi:[1,0] neg_lo:[0,1] neg_hi:[0,1]")
        e("v_mul_f32 v6, v6, v10\nv_mul_f32 v7, v7, v10\nv_mul_f32 v7, v7, v10")
        e("v_cvt_pk_bf16_f32 v12, v6, v7\nv_and_b32 v13, 0xffff0000, v12\nv_lshlrev_b32 v12, 16, v12")
        e("v_add_f32 v13, s62, v13"); s.bfround(13)
        def rnd4():
            e("v_cvt_pk_bf16_f32 v36, v36, v37\nv_cvt_pk_bf16_f32 v38, v38, v39\nv_and_b32 v37, 0xffff0000, v36\nv_and_b32 v39, 0xffff0000, v38\nv_lshlrev_b32 v36, 16, v36\nv_lshlrev_b32 v38, 16, v38")
        e("v_sqrt_f32 v13, v13"); rnd4(); s.bfround(13)
        e("v_pk_mul_f32 v[36:37], v[36:37], v[10:11] op_sel_hi:[1,0]\nv_pk_mul_f32 v[38:39], v[38:39], v[10:11] op_sel_hi:[1,0]\nv_rcp_f32 v10, v13")
        rnd4()
        e("v_pk_add_f32 v[36:37], v[36:37], v[12:13] op_sel_hi:[1,0] neg_lo:[0,1] neg_hi:[0,1]\nv_pk_add_f32 v[38:39], v[38:39], v[12:13] op_sel_hi:[1,0] neg_lo:[0,1] neg_hi:[0,1]")
        rnd4()
        e("v_pk_mul_f32 v[36:37], v[36:37], v[10:11] op_sel_hi:[1,0]\nv_pk_mul_f32 v[38:39], v[38:39], v[10:11] op_sel_hi:[1,0]")
        rnd4()
        s.stamp(14)
        e("v_mov_b32 v16, 0\nv_mov_b32 v17, 0\nv_mov_b32 v18, 0\nv_mov_b32 v19, 0")
        def pk_stage(items):
            def sel(i): return i & 1
            def pr(b, i): return f"v[{b + (i & ~1)}:{b + (i & ~1) + 1}]"
            for T, A, i, t in items:
                x = sel(i); e(f"v_pk_fma_f32 v[{t}:{t+1}], v[{T}:{T+1}], {pr(104,i)}, {pr(112,i)} op_sel:[0,{x},{x}] op_sel_hi:[1,{x},{x}]")
            for T, A, i, t in items: e(f"v_pk_mul_f32 v[{t+2}:{t+3}], v[{t}:{t+1}], v[{t}:{t+1}]")
            for T, A, i, t in items: e(f"v_pk_fma_f32 v[{t+2}:{t+3}], v[{t+2}:{t+3}], v[128:129], v[128:129] op_sel:[0,0,1] op_sel_hi:[1,0,1]")
            for T, A, i, t in items: e(f"v_pk_mul_f32 v[{t+2}:{t+3}], v[{t+2}:{t+3}], v[{t}:{t+1}]")
            for T, A, i, t in items: e(f"v_exp_f32 v{t+2}, v{t+2}\nv_exp_f32 v{t+3}, v{t+3}")
            for T, A, i, t in items:
                x = sel(i); e(f"v_pk_mul_f32 v[{t}:{t+1}], v[{t}:{t+1}], {pr(120,i)} op_sel:[0,{x}] op_sel_hi:[1,{x}]")
            for T, A, i, t in items: e(f"v_pk_add_f32 v[{t+2}:{t+3}], v[{t+2}:{t+3}], 1.0 op_sel_hi:[1,0]")
            for T, A, i, t in items: e(f"v_rcp_f32 v{t+2}, v{t+2}\nv_rcp_f32 v{t+3}, v{t+3}")
            if len(items) == 1: e("s_nop 0")
            for T, A, i, t in items: e(f"v_pk_fma_f32 v[{A}:{A+1}], v[{t}:{t+1}], v[{t+2}:{t+3}], v[{A}:{A+1}]")
        def sc_stage(items):
            for T, A, i, t in items: e(f"v_fma_f32 v{t}, v{T}, v{104+i}, v{112+i}")
            for T, A, i, t in items: e(f"v_mul_f32 v{t+1}, v{t}, v{t}")
            for T, A, i, t in items: e(f"v_fma_f32 v{t+1}, v{t+1}, v128, v129")
            for T, A, i, t in items: e(f"v_mul_f32 v{t+1}, v{t+1}, v{t}")
            for T, A, i, t in items: e(f"v_exp_f32 v{t+1}, v{t+1}")
            for T, A, i, t in items: e(f"v_mul_f32 v{t}, v{t}, v{120+i}")
            for T, A, i, t in items: e(f"v_add_f32 v{t+1}, 1.0, v{t+1}")
            for T, A, i, t in items: e(f"v_rcp_f32 v{t+1}, v{t+1}")
            for T, A, i, t in items: e(f"v_fmac_f32 v{A}, v{t}, v{t+1}")
        pk_stage([(36, 16, i, 40 + 4 * i) for i in range(7)])
        e("s_cmp_ge_u32 s30, 4\ns_cbranch_scc1 L_mlp1")
        pk_stage([(38, 18, i, 40 + 4 * i) for i in range(7)])
        e("s_branch L_mlp2\nL_mlp1:")
        sc_stage([(38, 18, i, 40 + 2 * i) for i in range(7)])
        e("L_mlp2:")
        s.rscatter(16)
        s.red16("v_add_f32", [16])
        e("v_lshrrev_b32 v4, 4, v1\nv_and_b32 v8, 1, v4\nv_lshlrev_b32 v8, 1, v8\nv_lshrrev_b32 v9, 1, v4\nv_or_b32 v8, v8, v9")
        e("s_and_b32 s53, s30, 3\ns_lshl_b32 s53, s53, 5\ns_lshr_b32 s54, s30, 2\ns_lshl_b32 s54, s54, 4\ns_add_u32 s53, s53, s54\nv_lshl_add_u32 v8, v8, 2, s53")
        e(f"s_mov_b32 exec_lo, 0x00010001\ns_mov_b32 exec_hi, 0x00010001\nds_write_b32 v8, v16 offset:{L_PART}\ns_mov_b64 exec, -1\ns_waitcnt lgkmcnt(0)\ns_barrier")
        e("s_cmp_lg_u32 s30, 0\ns_cbranch_scc1 L_fin")
        e("s_mov_b64 exec, 0x7f")
        e(f"v_add_u32 v5, {L_PART}, v2\nds_read2_b32 v[16:17], v5 offset0:0 offset1:8\nds_read2_b32 v[18:19], v5 offset0:16 offset1:24")
        e(f"v_add_u32 v4, s58, v2\nds_read_b32 v20, v4 offset:{L_H}\nds_read_b32 v21, v3 offset:{L_B2}")
        s.srd(36, 24, 3584)
        e("s_mul_i32 s53, s32, 896\ns_lshr_b32 s54, s58, 1\ns_add_u32 s53, s53, s54\nv_lshlrev_b32 v5, 1, v1")
        e("s_waitcnt lgkmcnt(0)\nv_add_f32 v16, v16, v17\nv_add_f32 v18, v18, v19\nv_add_f32 v16, v16, v18")
        s.bfround(16)
        e("v_add_f32 v16, v16, v21"); s.bfround(16)
        e("v_add_f32 v16, v16, v20\nv_cvt_pk_bf16_f32 v16, v16, v16\nbuffer_store_short v16, v5, s[36:39], s53 offen")
        s.stamp(15)
        s.write_stamps([0, 9, 10, 11, 12, 13, 14, 15])
        e("s_endpgm\nL_fin:")
        if o["stamps"]:
            e("s_cmp_lg_u32 s30, 7\ns_cbranch_scc1 L_end")
            s.write_stamps([8])

def main():
    import json
    out = sys.argv[1]
    opts = json.loads(sys.argv[2]) if len(sys.argv) > 2 else {}
    open(out, "w").write(G(**opts).gen())
if __name__ == "__main__":
    main()
```

```python
import sys, math, struct
NAME = "sequential_preLN__sliding_block_cached__mixer_token_mlp__decode_kernel"

L_QFLAG, L_SCNT, L_PCNT, L_NONCE = 0x0, 0x4, 0x8, 0xC
L_B2 = 0x10
L_M, L_L, L_F = 0x40, 0x80, 0xC0
L_Q = 0x100
L_OBF = 0x500
L_H = 0x900
L_XN = 0x1000
L_W = 0x1E80
L_PAR = 0x2000
L_WQ = 0x5000
L_XROW = 0x8800
L_OBUF = 0x9000
L_WO = 0xD000
L_LUT = L_WO
L_END = 0x1D000
W_E = 0x0
W_XC = 0x1000
W_ST = 0x2000
W_STL = 0x3000
W_LUT = 0x4000
W_Q = 0x10000
W_OG = 0x80000
W_OL = 0x100000
W_OUT = 0x180000
W_STAMP = 0x10000000
SPIN = 200000
E0 = 113
NHALF = 18 * 128

CSC = math.log2(math.e) / 16.0
K0 = -2.0 * math.log2(math.e) * math.sqrt(2.0 / math.pi)
K1 = K0 * 0.044715
def fbits(x): return "0x%08x" % struct.unpack("<I", struct.pack("<f", x))[0]
ALL = "row_mask:0xf bank_mask:0xf"

class G:
    def __init__(s, **o):
        s.L = []
        s.o = dict(kvflags="nt", wflags="nt", map_="g", stamps=False, rot=True, sl_q=6, sl1=2, sl2=2, slst=2,
                   first1=0, first2=0, pk=3, pve=2, pwo=1, pvl=0, pre=1, local=True, gfin=0, force_fb=False)
        s.o.update(o)
        s.uid = 0
    def e(s, t):
        for l in t.split("\n"):
            l = l.strip()
            if l: s.L.append(("" if l.endswith(":") else "    ") + l)
    def lab(s, p):
        s.uid += 1
        return f"L_{p}_{s.uid}"
    def stamp(s, i):
        if s.o["stamps"]:
            s.e(f"s_memrealtime s[{64+2*i}:{65+2*i}]")
    def write_stamps(s, idxs):
        if not s.o["stamps"]: return
        if s.o["stamps"] == "amp":
            k = s.o["amp"]
            if k in idxs and k != 0:
                l = s.lab("amp")
                s.e(f"s_cmp_lg_u32 s2, {s.o.get('ampwg', 0)}\ns_cbranch_scc1 {l}_o\ns_waitcnt lgkmcnt(0)\ns_sub_u32 s63, s{64+2*k}, s64\ns_mul_i32 s63, s63, 20\ns_memrealtime s[66:67]\ns_waitcnt lgkmcnt(0)\ns_mov_b32 s60, s66")
                s.e(f"{l}:\ns_sleep 4\ns_memrealtime s[66:67]\ns_waitcnt lgkmcnt(0)\ns_sub_u32 s62, s66, s60\ns_cmp_lt_u32 s62, s63\ns_cbranch_scc1 {l}\n{l}_o:")
            return
        s.e("s_waitcnt lgkmcnt(0)\ns_mov_b64 exec, 1\nv_mov_b32 v2, 0")
        s.e(f"s_lshl_b32 s63, s2, 7\ns_add_u32 s63, s63, {W_STAMP}")
        for i in idxs:
            r = 64 + 2 * i
            s.e(f"v_mov_b32 v4, s{r}\nv_mov_b32 v5, s{r+1}\nbuffer_store_dwordx2 v[4:5], v2, s[48:51], s63 offen offset:{8*i}\ns_nop 1")
    def srd(s, d, b, n):
        s.e(f"s_mov_b32 s{d}, s{b}\ns_mov_b32 s{d+1}, s{b+1}\ns_mov_b32 s{d+2}, {n}\ns_mov_b32 s{d+3}, 0x20000")
    def spin_open(s, p, sleep, first=0):
        f = s.lab(p + "f"); l = s.lab(p)
        if first: s.e(f"s_sleep {first}")
        s.e(f"s_mov_b32 s60, 0\ns_branch {f}\n{l}:\ns_sleep {sleep}\n{f}:")
        return l
    def spin_close(s, l):
        o = s.lab("out")
        s.e(f"s_cbranch_vccz {o}\ns_add_u32 s60, s60, 1\ns_cmp_le_u32 s60, {SPIN}\ns_cbranch_scc1 {l}\n{o}:")
    def red8(s, op, r):
        for c in ("quad_perm:[1,0,3,2]", "quad_perm:[2,3,0,1]", "row_half_mirror"):
            s.e(f"s_nop 1\n{op}_dpp v{r}, v{r}, v{r} {c} {ALL}")
    def red16(s, op, regs):
        for c in ("quad_perm:[1,0,3,2]", "quad_perm:[2,3,0,1]", "row_half_mirror", "row_mirror"):
            if len(regs) < 3: s.e("s_nop 1" if len(regs) == 1 else "s_nop 0")
            for r in regs:
                s.e(f"{op}_dpp v{r}, v{r}, v{r} {c} {ALL}")
    def xrow(s, op, r, t):
        for sw in ("v_permlane16_swap_b32", "v_permlane32_swap_b32"):
            s.e(f"v_mov_b32 v{t}, v{r}\ns_nop 1\n{sw} v{r}, v{t}\n{op} v{r}, v{r}, v{t}")
    def rscatter(s, x):
        s.e(f"s_nop 1\nv_permlane32_swap_b32 v{x}, v{x+1}\nv_permlane32_swap_b32 v{x+2}, v{x+3}")
        s.e(f"v_add_f32 v{x}, v{x}, v{x+1}\nv_add_f32 v{x+2}, v{x+2}, v{x+3}\ns_nop 1")
        s.e(f"v_permlane16_swap_b32 v{x}, v{x+2}\nv_add_f32 v{x}, v{x}, v{x+2}")
    def bfround(s, r):
        s.e(f"v_cvt_pk_bf16_f32 v{r}, v{r}, v{r}\nv_and_b32 v{r}, 0xffff0000, v{r}")
    def pk_stage(s, items, W1, B1, W2, KK):
        e = s.e
        def pr(b, i): return f"v[{b + (i & ~1)}:{b + (i & ~1) + 1}]"
        for T, A, i, t in items:
            x = i & 1; e(f"v_pk_fma_f32 v[{t}:{t+1}], v[{T}:{T+1}], {pr(W1,i)}, {pr(B1,i)} op_sel:[0,{x},{x}] op_sel_hi:[1,{x},{x}]")
        for T, A, i, t in items: e(f"v_pk_mul_f32 v[{t+2}:{t+3}], v[{t}:{t+1}], v[{t}:{t+1}]")
        for T, A, i, t in items: e(f"v_pk_fma_f32 v[{t+2}:{t+3}], v[{t+2}:{t+3}], v[{KK}:{KK+1}], v[{KK}:{KK+1}] op_sel:[0,0,1] op_sel_hi:[1,0,1]")
        for T, A, i, t in items: e(f"v_pk_mul_f32 v[{t+2}:{t+3}], v[{t+2}:{t+3}], v[{t}:{t+1}]")
        for T, A, i, t in items: e(f"v_exp_f32 v{t+2}, v{t+2}\nv_exp_f32 v{t+3}, v{t+3}")
        for T, A, i, t in items:
            x = i & 1; e(f"v_pk_mul_f32 v[{t}:{t+1}], v[{t}:{t+1}], {pr(W2,i)} op_sel:[0,{x}] op_sel_hi:[1,{x}]")
        for T, A, i, t in items: e(f"v_pk_add_f32 v[{t+2}:{t+3}], v[{t+2}:{t+3}], 1.0 op_sel_hi:[1,0]")
        for T, A, i, t in items: e(f"v_rcp_f32 v{t+2}, v{t+2}\nv_rcp_f32 v{t+3}, v{t+3}")
        for T, A, i, t in items: e(f"v_pk_fma_f32 v[{A}:{A+1}], v[{t}:{t+1}], v[{t+2}:{t+3}], v[{A}:{A+1}]")
    def load_params(s, W1, B1, W2, va, tmp):
        e = s.e
        e(f"v_lshlrev_b32 v{va}, 3, v1")
        for k, base in enumerate((W1, B1, W2)):
            for i in range(7):
                e(f"ds_read_b64 v[{tmp+2*i}:{tmp+2*i+1}], v{va} offset:{L_PAR + 4096*k + 512*i}")
            e("s_waitcnt lgkmcnt(0)")
            for i in range(14):
                e(f"v_lshlrev_b32 v{base+2*i}, 16, v{tmp+i}\nv_and_b32 v{base+2*i+1}, 0xffff0000, v{tmp+i}")

    def gen(s):
        o, e = s.o, s.e
        s.L.append(f"; @launch grid=(256,1,1) block=(768,1,1) lds={L_END}")
        s.L.append('.amdgcn_target "amdgcn-amd-amdhsa--gfx950"\n.text')
        s.L.append(f".globl {NAME}\n.p2align 8\n.type {NAME},@function\n{NAME}:")
        e("s_cmp_ge_u32 s2, 256\ns_cbranch_scc1 L_end")
        s.stamp(0)
        e("s_load_dwordx16 s[4:19], s[0:1], 0\ns_load_dwordx8 s[20:27], s[0:1], 64\ns_load_dwordx2 s[28:29], s[0:1], 96")
        e("s_setprio 3")
        e("v_lshrrev_b32 v2, 6, v0\nv_and_b32 v1, 63, v0\ns_nop 0\nv_readfirstlane_b32 s30, v2")
        if o["map_"] == "g":
            e("s_and_b32 s31, s2, 7\ns_lshr_b32 s33, s2, 3\ns_lshr_b32 s32, s33, 3\ns_and_b32 s33, s33, 7")
        else:
            e("s_and_b32 s33, s2, 7\ns_lshr_b32 s31, s2, 3\ns_lshr_b32 s32, s31, 3\ns_and_b32 s31, s31, 7")
        e("s_lshl_b32 s34, s32, 3\ns_add_u32 s34, s34, s31\ns_lshl_b32 s35, s34, 3\ns_add_u32 s35, s35, s33")
        e(f"s_lshl_b32 s3, s32, 1\ns_add_u32 s3, s3, {o['gfin']}\ns_and_b32 s3, s3, 7\ns_lshl_b32 s3, s3, 3\ns_add_u32 s3, s3, 7\ns_and_b32 s36, s35, 63\ns_cmp_eq_u32 s3, s36\ns_cselect_b32 s3, 1, 0")
        e("s_cmp_ge_u32 s30, 4\ns_cbranch_scc1 L_stream\ns_cmp_eq_u32 s30, 0\ns_cbranch_scc1 L_qwave")
        s.prefetch()
        s.qwave()
        s.stream()
        e("L_end:\ns_endpgm")
        s.L.append(f""".section .rodata,"a"
.p2align 6
.amdhsa_kernel {NAME}
  .amdhsa_next_free_vgpr 168
  .amdhsa_next_free_sgpr 96
  .amdhsa_accum_offset 168
  .amdhsa_group_segment_fixed_size 0
  .amdhsa_kernarg_size 104
  .amdhsa_user_sgpr_count 2
  .amdhsa_user_sgpr_kernarg_segment_ptr 1
  .amdhsa_system_sgpr_workgroup_id_x 1
.end_amdhsa_kernel""")
        return "\n".join(s.L) + "\n"

    def prefetch(s):
        o, e = s.o, s.e
        wf = o["wflags"]
        W1, B1, W2, KK, T, A, TMP = 16, 44, 72, 100, 102, 108, 116
        e("s_sub_u32 s30, s30, 1\nv_lshlrev_b32 v14, 4, v1\nv_mov_b32 v15, 0")
        e("s_waitcnt lgkmcnt(0)")
        e(f"s_load_dword s61, s[28:29], {W_E}")
        e("s_cmp_eq_u32 s30, 0\ns_cselect_b32 s56, s16, s18\ns_cselect_b32 s57, s17, s19\ns_cmp_eq_u32 s30, 2\ns_cselect_b32 s56, s20, s56\ns_cselect_b32 s57, s21, s57")
        e("s_mov_b32 s58, 3584\ns_mov_b32 s59, 0x20000")
        e(f"s_lshl_b32 s52, s30, 12\ns_add_u32 s52, s52, {L_PAR}")
        for i in range(4):
            e(f"s_add_u32 m0, s52, {i*1024}\ns_movk_i32 s53, {i*1024}\nbuffer_load_dwordx4 v14, s[56:59], s53 offen lds")
        s.srd(40, 22, 2)
        e("buffer_load_ushort v13, v15, s[40:43], 0 offen")
        s.srd(36, 12, 4096 * 896)
        s.srd(48, 28, 0x20000000)
        e("s_barrier")
        e(f"s_setprio {o['pwo']}")
        e("v_lshrrev_b32 v2, 3, v1\nv_mul_u32_u24 v3, 896, v2\nv_and_b32 v4, 1, v1\nv_lshl_add_u32 v3, v4, 4, v3\nv_bfe_u32 v4, v1, 4, 1\nv_bfe_u32 v5, v1, 1, 2\nv_sub_u32 v5, v5, v4")
        for par in range(2):
            e(f"v_subrev_u32 v6, {2*par}, v5\nv_and_b32 v6, 3, v6\nv_lshl_add_u32 v{10+par}, v6, 5, v3")
        e(f"s_mul_i32 s52, s35, 18\ns_mul_i32 s53, s30, 6\ns_add_u32 s52, s52, s53\ns_cmp_ge_u32 s52, {NHALF}\ns_cselect_b32 s53, {0x8000 - NHALF}, 0\ns_add_u32 s52, s52, s53\ns_add_u32 s52, s52, {E0*128}\ns_lshl_b32 s52, s52, 16")
        for i in range(6):
            e(f"s_add_u32 s53, s52, {i << 16}\nv_mov_b32 v{T+i}, s53\nv_mov_b32 v{A+i}, 0")
        e(f"v_mov_b32 v{KK}, {fbits(K1)}\nv_mov_b32 v{KK+1}, {fbits(K0)}\nv_mov_b32 v12, 1")
        e(f"s_waitcnt vmcnt(0)\ns_mov_b64 exec, 1\nds_add_u32 v15, v12 offset:{L_PCNT}\ns_mov_b64 exec, -1\nv_lshlrev_b32 v13, 16, v13\nds_write_b32 v15, v13 offset:{L_B2}")
        l = s.spin_open("pc", 1)
        e(f"ds_read_b32 v12, v15 offset:{L_PCNT}\ns_waitcnt lgkmcnt(0)\nv_cmp_ne_u32 vcc, 3, v12")
        s.spin_close(l)
        e("s_add_u32 s61, s61, 1")
        s.load_params(W1, B1, W2, 12, TMP)
        if not o.get("nolut"):
            for i0 in range(0, 28, 2):
                s.pk_stage([(T + 2 * p, A + 2 * p, i0 + d, TMP + 4 * (3 * d + p)) for d in range(2) for p in range(3)], W1, B1, W2, KK)
        s.red16("v_add_f32", [A + i for i in range(6)])
        for sw in ("v_permlane16_swap_b32", "v_permlane32_swap_b32"):
            for i in range(6): e(f"v_mov_b32 v{TMP+i}, v{A+i}")
            for i in range(6): e(f"{sw} v{A+i}, v{TMP+i}")
            for i in range(6): e(f"v_add_f32 v{A+i}, v{A+i}, v{TMP+i}")
        for p in range(3): e(f"v_cvt_pk_bf16_f32 v{TMP+p}, v{A+2*p}, v{A+2*p+1}")
        for p in range(3): e(f"v_lshlrev_b32 v{A+2*p}, 16, v{TMP+p}\nv_and_b32 v{A+2*p+1}, 0xffff0000, v{TMP+p}")
        for i in range(6): e(f"v_add_f32 v{A+i}, v{A+i}, v13")
        for p in range(3): e(f"v_cvt_pk_bf16_f32 v{TMP+2*p}, v{A+2*p}, v{A+2*p+1}\nv_mov_b32 v{TMP+2*p+1}, s61")
        e(f"s_mul_i32 s52, s35, 72\ns_mul_i32 s53, s30, 24\ns_add_u32 s52, s52, s53\ns_add_u32 s52, s52, {W_LUT}\ns_mov_b64 exec, 1")
        for p in range(3): e(f"buffer_store_dwordx2 v[{TMP+2*p}:{TMP+2*p+1}], v15, s[48:51], s52 offen offset:{8*p} sc1")
        e("s_mov_b64 exec, -1")
        e("s_cmp_eq_u32 s33, 7\ns_cbranch_scc1 L_pf_t7")
        e("s_mul_i32 s52, s31, 458752\ns_lshl_b32 s53, s33, 7\ns_add_u32 s52, s52, s53")
        e("s_cmp_eq_u32 s30, 1\ns_cbranch_scc1 L_pf1\ns_cmp_eq_u32 s30, 2\ns_cbranch_scc1 L_pf2")
        for pw in range(3):
            if pw: e(f"L_pf{pw}:")
            for ch in (range(pw, 64, 3) if not o.get("nowo") else []):
                e(f"s_mov_b32 m0, {L_WO + ch*1024}\ns_add_u32 s53, s52, {ch*8*896}\nbuffer_load_dwordx4 v{10 + (ch & 1)}, s[36:39], s53 offen {wf} lds")
            e("s_branch L_pf_done")
        e("L_pf_t7:\ns_cmp_eq_u32 s3, 0\ns_cbranch_scc1 L_pf_done")
        s.srd(40, 4, 3584)
        e(f"s_mov_b32 m0, {L_XROW}\ns_mul_i32 s53, s32, 896\nbuffer_load_dwordx4 v14, s[40:43], s53 offen lds")
        e("v_lshrrev_b32 v2, 3, v1\nv_lshlrev_b32 v2, 15, v2\nv_and_b32 v3, 7, v1\nv_lshl_add_u32 v2, v3, 12, v2")
        e(f"s_and_b32 s53, s32, 1\ns_lshl_b32 s53, s53, 11\ns_lshr_b32 s54, s32, 1\ns_lshl_b32 s54, s54, 10\ns_add_u32 s53, s53, s54\ns_add_u32 s53, s53, {W_Q+4}")
        e(f"s_mul_i32 s54, s30, 6144\ns_add_u32 s55, s54, {W_LUT}\ns_add_u32 s56, s55, 4096\ns_lshr_b32 s54, s54, 1\nv_lshl_add_u32 v3, v1, 3, s54")
        l = s.spin_open("lg", 16)
        e("buffer_load_dword v4, v2, s[48:51], s53 offen sc1")
        for i in range(6):
            e(f"buffer_load_dwordx4 v[{16+4*i}:{19+4*i}], v14, s[48:51], {'s55' if i < 4 else 's56'} offen offset:{1024*(i & 3)} sc1")
        e("s_waitcnt vmcnt(0)\nv_xor_b32 v4, s61, v4")
        for i in range(6):
            e(f"v_xor_b32 v{17+4*i}, s61, v{17+4*i}\nv_xor_b32 v{19+4*i}, s61, v{19+4*i}\nv_or3_b32 v4, v4, v{17+4*i}, v{19+4*i}")
        e("v_cmp_ne_u32 vcc, 0, v4")
        s.spin_close(l)
        for i in range(6):
            e(f"v_mov_b32 v{17+4*i}, v{18+4*i}")
        e(f"v_add_u32 v3, {L_LUT}, v3")
        for i in range(6):
            e(f"ds_write_b64 v3, v[{16+4*i}:{17+4*i}] offset:{512*i}")
        e("L_pf_done:\ns_waitcnt vmcnt(0) lgkmcnt(0)\ns_barrier\ns_endpgm")

    def qwave(s):
        o, e = s.o, s.e
        wf = o["wflags"]
        e("L_qwave:")
        e(f"v_mov_b32 v2, 0\nv_mov_b32 v3, 0\nv_mov_b32 v4, 0\nds_write_b96 v2, v[2:4] offset:{L_QFLAG}")
        e(f"v_and_b32 v4, 15, v1\nv_lshlrev_b32 v4, 2, v4\nv_mov_b32 v12, -1\nds_write_b32 v4, v12 offset:{L_W}")
        e("v_lshrrev_b32 v3, 4, v1\nv_and_b32 v5, 15, v1\nv_mul_u32_u24 v4, 896, v3\nv_mul_u32_u24 v6, 56, v5\nv_add_u32 v6, v4, v6")
        e("v_lshrrev_b32 v7, 2, v1\nv_lshlrev_b32 v7, 13, v7\nv_and_b32 v8, 3, v1\nv_lshl_add_u32 v7, v8, 4, v7")
        e("v_lshlrev_b32 v9, 4, v1\nv_lshlrev_b32 v10, 4, v5\nv_lshl_add_u32 v10, v3, 11, v10")
        e("v_mov_b32 v13, -1\nv_mov_b32 v14, -1\nv_mov_b32 v15, -1")
        e("s_and_b32 s54, s32, 1\ns_lshl_b32 s53, s33, 1\ns_add_u32 s54, s54, s53\ns_lshr_b32 s47, s32, 1")
        e("s_lshl_b32 s52, s31, 10\ns_lshl_b32 s53, s54, 6\ns_add_u32 s52, s52, s53\ns_mul_i32 s53, s47, 1835008\ns_add_u32 s52, s52, s53")
        e("s_waitcnt lgkmcnt(0)")
        s.srd(36, 4, 3584)
        s.srd(40, 10, 448 * 8192)
        e("buffer_load_dwordx4 v[16:19], v6, s[36:39], 0 offen\nbuffer_load_dwordx4 v[20:23], v6, s[36:39], 0 offen offset:16")
        e("buffer_load_dwordx4 v[24:27], v6, s[36:39], 0 offen offset:32\nbuffer_load_dwordx2 v[28:29], v6, s[36:39], 0 offen offset:48")
        for m in range(14):
            e(f"s_mov_b32 m0, {L_WQ + m*1024}\ns_add_u32 s53, s52, {m*16*8192}\nbuffer_load_dwordx4 v7, s[40:43], s53 offen {wf} lds")
        s.srd(48, 28, 0x20000000)
        e(f"s_load_dword s46, s[28:29], {W_E}\ns_getreg_b32 s45, hwreg(HW_REG_XCC_ID, 0, 4)")
        e(f"s_lshl_b32 s55, s31, 4\ns_add_u32 s55, s55, s54\ns_lshl_b32 s55, s55, 1\ns_add_u32 s55, s55, s47\ns_lshl_b32 s55, s55, 10\ns_add_u32 s55, s55, {W_Q}")
        e(f"s_lshl_b32 s56, s35, 4\ns_add_u32 s56, s56, {W_ST}\ns_add_u32 s59, s56, {W_STL - W_ST}")
        e(f"s_lshl_b32 s57, s35, 11\ns_add_u32 s44, s57, {W_OL}\ns_add_u32 s57, s57, {W_OG}")
        e(f"s_lshl_b32 s58, s34, 12\ns_lshl_b32 s53, s33, 8\ns_add_u32 s58, s58, s53\ns_add_u32 s58, s58, {W_OUT}")
        e("buffer_store_dwordx4 v[12:15], v9, s[48:51], s57 offen sc1\nbuffer_store_dwordx4 v[12:15], v9, s[48:51], s57 offen offset:1024 sc1")
        e("buffer_store_dwordx4 v[12:15], v9, s[48:51], s44 offen\nbuffer_store_dwordx4 v[12:15], v9, s[48:51], s44 offen offset:1024")
        e("s_mov_b32 exec_hi, 0\nbuffer_store_dwordx4 v[12:15], v10, s[48:51], s58 offen sc1")
        e("s_mov_b64 exec, 1\nbuffer_store_dwordx4 v[12:15], v9, s[48:51], s56 offen sc1\nbuffer_store_dwordx4 v[12:15], v9, s[48:51], s59 offen\ns_mov_b64 exec, -1")
        e("s_barrier")
        e("s_waitcnt vmcnt(21)")
        s.stamp(1)
        for k in range(14):
            e(f"v_lshlrev_b32 v{32+2*k}, 16, v{16+k}\nv_and_b32 v{33+2*k}, 0xffff0000, v{16+k}")
        e(f"v_mov_b32_dpp v60, v32 row_newbcast:0 {ALL}")
        e("v_mov_b32 v62, 0\nv_mov_b32 v63, 0\nv_mov_b32 v64, 0\nv_mov_b32 v65, 0")
        for k in range(14):
            e(f"v_pk_add_f32 v[66:67], v[{32+2*k}:{33+2*k}], v[60:61] op_sel_hi:[1,0] neg_lo:[0,1] neg_hi:[0,1]")
            e(f"v_pk_add_f32 v[62:63], v[62:63], v[66:67]\nv_pk_fma_f32 v[64:65], v[66:67], v[66:67], v[64:65]")
        e("v_add_f32 v62, v62, v63\nv_add_f32 v64, v64, v65")
        s.red16("v_add_f32", [62, 64])
        e(f"s_mov_b32 s61, {fbits(1.0/448)}\ns_mov_b32 s62, {fbits(1e-5)}")
        e("v_mul_f32 v62, s61, v62\nv_mul_f32 v64, s61, v64\nv_fma_f32 v64, -v62, v62, v64\nv_max_f32 v64, 0, v64\nv_add_f32 v62, v60, v62")
        s.bfround(62); s.bfround(64)
        e("v_add_f32 v64, s62, v64"); s.bfround(64)
        e("v_sqrt_f32 v64, v64\ns_nop 0"); s.bfround(64)
        e("v_rcp_f32 v64, v64")
        for k in range(14):
            a = 32 + 2 * k
            e(f"v_pk_add_f32 v[{a}:{a+1}], v[{a}:{a+1}], v[62:63] op_sel_hi:[1,0] neg_lo:[0,1] neg_hi:[0,1]")
            e(f"v_cvt_pk_bf16_f32 v66, v{a}, v{a+1}\nv_lshlrev_b32 v{a}, 16, v66\nv_and_b32 v{a+1}, 0xffff0000, v66")
            e(f"v_pk_mul_f32 v[{a}:{a+1}], v[{a}:{a+1}], v[64:65] op_sel_hi:[1,0]")
            e(f"v_cvt_pk_bf16_f32 v{16+k}, v{a}, v{a+1}")
        for k in range(7):
            e(f"ds_write_b64 v6, v[{16+2*k}:{17+2*k}] offset:{L_XN + 8*k}")
        e("v_mul_u32_u24 v2, 896, v8\nv_lshl_add_u32 v2, v3, 4, v2\ns_mul_i32 s53, s47, 448\nv_add_u32 v2, s53, v2")
        e("v_bfe_u32 v4, v1, 2, 2\nv_lshlrev_b32 v4, 6, v4\nv_lshl_add_u32 v4, v8, 3, v4\nv_lshl_add_u32 v4, v3, 9, v4")
        e("s_waitcnt lgkmcnt(0)")
        for m in range(7):
            e(f"ds_read_b128 v[{32+4*m}:{35+4*m}], v2 offset:{L_XN + 64*m}")
        e("s_add_u32 s46, s46, 1\nv_mov_b32 v7, 0")
        e("s_waitcnt vmcnt(0)")
        s.stamp(2)
        for m in range(7):
            for ct in range(2):
                r = 64 + 8 * m + 4 * ct
                e(f"ds_read_b64_tr_b16 v[{r}:{r+1}], v4 offset:{L_WQ + 2048*m + 32*ct}\nds_read_b64_tr_b16 v[{r+2}:{r+3}], v4 offset:{L_WQ + 2048*m + 32*ct + 256}")
        e(f"v_mov_b32 v30, s45\nv_mov_b32 v31, s46\ns_lshl_b32 s53, s35, 3\ns_add_u32 s53, s53, {W_XC}\ns_mov_b64 exec, 1\nbuffer_store_dwordx2 v[30:31], v7, s[48:51], s53 offen sc1\nds_write_b32 v7, v31 offset:{L_NONCE}\ns_mov_b64 exec, -1")
        e("s_waitcnt lgkmcnt(0)")
        for m in range(7):
            for ct in range(2):
                r = 64 + 8 * m + 4 * ct; d = 16 + 4 * ct
                e(f"v_mfma_f32_16x16x32_bf16 v[{d}:{d+3}], v[{r}:{r+3}], v[{32+4*m}:{35+4*m}], {'0' if m == 0 else f'v[{d}:{d+3}]'}")
        e("v_lshlrev_b32 v2, 8, v8\nv_lshl_add_u32 v2, v3, 5, v2\nv_bfe_u32 v4, v1, 3, 1\nv_lshl_add_u32 v2, v4, 7, v2\nv_bfe_u32 v5, v1, 2, 1\nv_lshl_add_u32 v2, v5, 4, v2")
        e("v_cmp_eq_u32 s[62:63], 1, v4\nv_cmp_eq_u32 vcc, 1, v5\nv_mov_b32 v25, s46\nv_mov_b32 v27, s46")
        e("v_cndmask_b32 v24, v16, v18, vcc\nv_cndmask_b32 v26, v17, v19, vcc\nv_cndmask_b32 v28, v20, v22, vcc\nv_cndmask_b32 v29, v21, v23, vcc")
        e("v_cndmask_b32 v24, v24, v28, s[62:63]\nv_cndmask_b32 v26, v26, v29, s[62:63]")
        e("buffer_store_dwordx4 v[24:27], v2, s[48:51], s55 offen sc1")
        s.stamp(3)
        e(f"s_lshl_b32 s53, s31, 15\ns_lshl_b32 s54, s32, 8\ns_add_u32 s53, s53, s54\ns_add_u32 s36, s53, {W_Q}\ns_add_u32 s37, s36, 8192\ns_add_u32 s38, s36, 16384\ns_add_u32 s39, s36, 24576")
        e(f"s_lshl_b32 s54, s34, 6\ns_add_u32 s54, s54, {W_XC}\nv_and_b32 v5, 7, v1\nv_lshlrev_b32 v4, 3, v5\nv_lshlrev_b32 v11, 2, v1")
        l = s.spin_open("q", o["sl_q"], o.get("firstq", 0))
        e("buffer_load_dwordx2 v[30:31], v4, s[48:51], s54 offen sc1")
        for i in range(4):
            for kh in range(2):
                r = 32 + 8 * i + 4 * kh
                e(f"buffer_load_dwordx4 v[{r}:{r+3}], v10, s[48:51], s{36+i} offen offset:{1024*kh} sc1")
        e("s_waitcnt vmcnt(0)\nv_xor_b32 v6, s46, v31")
        for i in range(8):
            r = 32 + 4 * i
            e(f"v_xor_b32 v{r+1}, s46, v{r+1}\nv_xor_b32 v{r+3}, s46, v{r+3}\nv_or3_b32 v6, v6, v{r+1}, v{r+3}")
        e("v_cmp_ne_u32 vcc, 0, v6")
        s.spin_close(l)
        s.stamp(4)
        for i in range(4):
            r = 32 + 8 * i
            e(f"v_add_f32 v{r}, v{r}, v{r+4}\nv_add_f32 v{r+2}, v{r+2}, v{r+6}\nv_cvt_pk_bf16_f32 v{r}, v{r}, v{r+2}\nds_write_b32 v11, v{r} offset:{L_Q + 256*i}")
        e("v_cmp_ne_u32 vcc, s45, v30\ns_cmp_eq_u64 vcc, 0\ns_cselect_b32 s45, %d, 1\nv_mov_b32 v6, s45" % (2 if o["local"] else 1))
        e(f"s_waitcnt lgkmcnt(0)\nds_write_b32 v7, v6 offset:{L_QFLAG}")
        s.stamp(5)
        l = s.spin_open("sc", 2)
        e(f"ds_read_b32 v6, v7 offset:{L_SCNT}\ns_waitcnt lgkmcnt(0)\nv_cmp_ne_u32 vcc, 8, v6")
        s.spin_close(l)
        s.stamp(6)
        e(f"v_and_b32 v2, 15, v1\nv_lshlrev_b32 v2, 2, v2\nds_read_b32 v16, v2 offset:{L_M}\nds_read_b32 v17, v2 offset:{L_L}\ns_waitcnt lgkmcnt(0)")
        e("v_mov_b32 v18, v16")
        s.red8("v_max_f32", 18)
        e(f"v_sub_f32 v19, v16, v18\nv_exp_f32 v16, v19\nv_and_b32 v3, 8, v1\nv_mul_f32 v19, v16, v17\nds_write_b32 v2, v16 offset:{L_F}")
        s.red8("v_add_f32", 19)
        e("v_min_u32 v18, -2, v18\nv_min_u32 v19, -2, v19")
        e("s_mov_b64 exec, 0x101\nbuffer_store_dwordx2 v[18:19], v3, s[48:51], s59 offen\nbuffer_store_dwordx2 v[18:19], v3, s[48:51], s56 offen sc1\ns_mov_b64 exec, -1")
        e(f"v_lshl_add_u32 v3, v5, 4, v3\ns_cmp_eq_u32 s45, 2\ns_cselect_b32 s54, {W_STL - W_ST}, 0\ns_lshl_b32 s53, s34, 7\ns_add_u32 s53, s53, s54\ns_add_u32 s53, s53, {W_ST}")
        e("s_waitcnt lgkmcnt(0)\ns_barrier")
        e("s_cmp_eq_u32 s33, 7\ns_cbranch_scc1 L_q_done")
        e("s_mov_b64 exec, 0xffff")
        l = s.spin_open("st", o["slst"])
        e(f"buffer_load_dwordx2 v[20:21], v3, s[48:51], s53 offen sc1\ns_waitcnt vmcnt(0)")
        e("v_max_u32 v6, v20, v21\nv_cmp_eq_u32 vcc, -1, v6")
        s.spin_close(l)
        e("v_mov_b32 v22, v20")
        s.red8("v_max_f32", 22)
        e("v_sub_f32 v20, v20, v22\nv_exp_f32 v16, v20\ns_nop 0\nv_mul_f32 v20, v16, v21")
        s.red8("v_add_f32", 20)
        e(f"v_rcp_f32 v20, v20\ns_nop 0\nv_mul_f32 v16, v16, v20\nv_min_u32 v16, -2, v16\nds_write_b32 v2, v16 offset:{L_W}\ns_waitcnt lgkmcnt(0)")
        e("L_q_done:")
        s.stamp(7)
        s.write_stamps([1, 2, 3, 4, 5, 6, 7])
        e("s_endpgm")

    def issue(s, which, lo, hi):
        srd, vo, base = (("s[36:39]", "v14", 40), ("s[40:43]", "v15", 104))[which]
        for i in range(lo, hi):
            kg, half = i >> 1, i & 1
            r = base + 4 * i
            s.e(f"buffer_load_dwordx4 v[{r}:{r+3}], {vo}, {srd}, s{44 + (kg >> 1)} offen offset:{(kg & 1)*2048 + half*256} {s.o['kvflags']}")

    def stream(s):
        o, e = s.o, s.e
        e("L_stream:")
        e("s_sub_u32 s30, s30, 4")
        if o["rot"]:
            e("s_lshr_b32 s52, s2, 3\ns_add_u32 s52, s52, s30\ns_and_b32 s52, s52, 7\ns_lshr_b32 s54, s2, 6")
        else:
            e("s_mov_b32 s52, s30\ns_mov_b32 s54, 0")
        e("s_lshl_b32 s52, s52, 14\ns_lshl_b32 s53, s34, 22\ns_add_u32 s52, s52, s53\ns_lshl_b32 s53, s33, 17\ns_add_u32 s52, s52, s53")
        e(f"s_add_u32 s52, s52, {6144*512}")
        for i in range(4):
            e(f"s_add_u32 s53, s54, {i}\ns_and_b32 s53, s53, 3\ns_lshl_b32 s53, s53, 12\ns_add_u32 s{44+i}, s52, s53")
        e("v_lshrrev_b32 v2, 4, v1\nv_and_b32 v3, 3, v1\nv_lshlrev_b32 v3, 4, v3\nv_lshl_add_u32 v3, v2, 6, v3\nv_bfe_u32 v4, v1, 2, 2\nv_lshl_add_u32 v14, v4, 9, v3")
        e("v_and_b32 v5, 15, v1\nv_lshlrev_b32 v5, 4, v5\nv_lshl_add_u32 v15, v2, 9, v5")
        e("s_waitcnt lgkmcnt(0)")
        s.srd(36, 6, 0x8000000)
        s.srd(40, 8, 0x8000000)
        e(f"s_setprio {o['pk']}")
        s.issue(0, 0, o["pre"])
        e("s_barrier")
        s.issue(0, o["pre"], 16)
        s.srd(48, 28, 0x20000000)
        e(f"s_setprio {o['pve']}\ns_cmp_lt_u32 s30, 4\ns_cbranch_scc1 L_late1\ns_setprio {o['pvl']}\nL_late1:")
        s.issue(1, 0, 16)
        e("s_setprio 3")
        e("v_bfe_u32 v4, v1, 3, 1\nv_lshl_add_u32 v32, v4, 9, v3")
        e("v_and_b32 v4, 1, v1\nv_lshlrev_b32 v4, 4, v4\nv_mov_b32 v5, 0xffff\nv_lshlrev_b32 v5, v4, v5\nv_bfe_u32 v4, v1, 1, 2")
        for r in range(4):
            e(f"v_cmp_eq_u32 vcc, {r}, v4\ns_nop 1\nv_cndmask_b32 v{10+r}, 0, v5, vcc")
        e(f"s_mov_b32 s61, {fbits(CSC)}\nv_mov_b32 v33, 0")
        l = s.spin_open("qw", 2)
        e(f"ds_read_b32 v34, v33 offset:{L_QFLAG}\ns_waitcnt lgkmcnt(0)\nv_cmp_eq_u32 vcc, 0, v34")
        s.spin_close(l)
        e(f"ds_read_b128 v[2:5], v32 offset:{L_Q}\nds_read_b128 v[6:9], v32 offset:{L_Q+256}\nv_readfirstlane_b32 s59, v34")
        e("s_waitcnt vmcnt(16) lgkmcnt(0)")
        def C(kg): return 16 if kg == 0 else 40 + 8 * (kg - 1)
        for kg in range(8):
            k = 40 + 8 * kg; c = C(kg)
            e(f"v_mfma_f32_16x16x32_bf16 v[{c}:{c+3}], v[{k}:{k+3}], v[2:5], 0")
            e(f"v_mfma_f32_16x16x32_bf16 v[{c}:{c+3}], v[{k+4}:{k+7}], v[6:9], v[{c}:{c+3}]")
        e("s_nop 1")
        for kg in range(8):
            e(f"v_mov_b32_dpp v{24+kg}, v{C(kg)} quad_perm:[0,0,0,0] {ALL}")
        for r in range(1, 4):
            for kg in range(8):
                e(f"v_add_f32_dpp v{24+kg}, v{C(kg)+r}, v{24+kg} quad_perm:[{r},{r},{r},{r}] {ALL}")
        for kg in range(8): e(f"v_cvt_pk_bf16_f32 v{24+kg}, v{24+kg}, v{24+kg}")
        for kg in range(8): e(f"v_and_b32 v{24+kg}, 0xffff0000, v{24+kg}")
        e("v_max3_f32 v32, v24, v25, v26\nv_max3_f32 v32, v32, v27, v28\nv_max3_f32 v32, v32, v29, v30\nv_max_f32 v32, v32, v31")
        s.xrow("v_max_f32", 32, 34)
        e("v_mul_f32 v32, s61, v32")
        for kg in range(8): e(f"v_fma_f32 v{24+kg}, v{24+kg}, s61, -v32")
        for kg in range(8): e(f"v_exp_f32 v{24+kg}, v{24+kg}")
        e("v_add_f32 v35, v24, v25\nv_add_f32 v36, v26, v27\nv_add_f32 v37, v28, v29\nv_add_f32 v38, v30, v31\nv_add_f32 v35, v35, v36\nv_add_f32 v37, v37, v38\nv_add_f32 v35, v35, v37")
        s.xrow("v_add_f32", 35, 34)
        e(f"v_and_b32 v36, 8, v1\nv_lshlrev_b32 v36, 2, v36\ns_lshl_b32 s53, s30, 2\nv_add_u32 v36, s53, v36\nv_mov_b32 v37, 1")
        e(f"s_mov_b64 exec, 0x101\nds_write_b32 v36, v32 offset:{L_M}\nds_write_b32 v36, v35 offset:{L_L}\ns_mov_b64 exec, 1\nds_add_u32 v33, v37 offset:{L_SCNT}\ns_mov_b64 exec, -1")
        for kg in range(8): e(f"v_cvt_pk_bf16_f32 v{24+kg}, v{24+kg}, v{24+kg}")
        for kg in range(8):
            for r in range(4): e(f"v_and_b32 v{40+4*kg+r}, v{24+kg}, v{10+r}")
        e("s_lshl_b32 s53, s30, 11\nv_lshlrev_b32 v32, 4, v1\nv_add_u32 v33, s53, v32")
        e("s_and_b32 s53, s30, 1\ns_lshl_b32 s53, s53, 5\nv_mov_b32 v2, s53\ns_lshl_b32 s53, s30, 9\nv_add_u32 v3, s53, v32")
        e(f"s_lshl_b32 s54, s35, 11\ns_add_u32 s55, s54, {W_OL}\ns_add_u32 s54, s54, {W_OG}")
        e("v_lshrrev_b32 v4, 4, v1\nv_and_b32 v5, 15, v1\nv_lshlrev_b32 v7, 4, v5")
        e("v_and_b32 v8, 1, v4\nv_lshlrev_b32 v8, 1, v8\nv_lshrrev_b32 v9, 1, v4\nv_or_b32 v8, v8, v9")
        e("v_bfe_u32 v6, v1, 3, 1\nv_and_b32 v9, 1, v4\nv_lshl_add_u32 v6, v9, 1, v6\nv_add_u32 v6, s30, v6\nv_and_b32 v6, 3, v6\nv_lshlrev_b32 v6, 5, v6")
        e(f"v_lshl_add_u32 v6, v4, 10, v6\nv_bfe_u32 v9, v1, 2, 2\nv_lshl_add_u32 v6, v9, 7, v6\nv_and_b32 v9, 3, v1\nv_lshl_add_u32 v6, v9, 3, v6\ns_lshr_b32 s53, s30, 2\ns_lshl_b32 s56, s53, 15\ns_add_u32 s56, s56, {L_WO}\nv_add_u32 v6, s56, v6")
        e("s_lshl_b32 s56, s53, 9\nv_lshl_add_u32 v32, v4, 4, s56")
        e("v_lshl_add_u32 v14, v4, 12, v7")
        e("s_bfe_u32 s56, s30, 0x10001\ns_lshl_b32 s57, s56, 5\nv_lshl_add_u32 v36, v4, 3, s57")
        e("s_lshl_b32 s56, s56, 9\ns_lshl_b32 s57, s53, 8\ns_add_u32 s56, s56, s57\ns_and_b32 s57, s30, 1\ns_lshl_b32 s57, s57, 3\ns_add_u32 s56, s56, s57")
        e("v_lshl_add_u32 v15, v8, 1, v7\nv_add_u32 v15, s56, v15")
        e(f"s_cmp_eq_u32 s59, 2\ns_cselect_b32 s56, {W_OL - W_OG}, 0\ns_add_u32 s56, s56, {W_OG}\ns_lshl_b32 s57, s34, 14\ns_add_u32 s56, s56, s57\ns_lshl_b32 s57, s30, 8\ns_add_u32 s56, s56, s57")
        e(f"s_lshl_b32 s57, s34, 12\ns_lshl_b32 s53, s53, 11\ns_add_u32 s57, s57, s53\ns_lshl_b32 s53, s33, 8\ns_add_u32 s57, s57, s53\ns_and_b32 s53, s30, 3\ns_lshl_b32 s53, s53, 6\ns_add_u32 s57, s57, s53\ns_add_u32 s57, s57, {W_OUT}")
        e("v_lshlrev_b32 v35, 4, v4")
        for kg in range(8):
            a = 40 + 4 * kg; v = 104 + 8 * kg
            e(f"s_waitcnt vmcnt({14-2*kg})")
            e(f"v_mfma_f32_16x16x32_bf16 v[16:19], v[{a}:{a+3}], v[{v}:{v+3}], {'0' if kg == 0 else 'v[16:19]'}")
            e(f"v_mfma_f32_16x16x32_bf16 v[20:23], v[{a}:{a+3}], v[{v+4}:{v+7}], {'0' if kg == 0 else 'v[20:23]'}")
        s.stamp(8)
        e(f"s_nop 6\nds_write_b128 v33, v[16:19] offset:{L_OBUF}\nds_write_b128 v33, v[20:23] offset:{L_OBUF+1024}")
        e("s_waitcnt lgkmcnt(0)\ns_barrier")
        s.stamp(9)
        e("s_cmp_ge_u32 s30, 4\ns_cbranch_scc1 L_nored")
        e("s_mov_b32 exec_hi, 0")
        e(f"ds_read_b128 v[24:27], v2 offset:{L_F}\nds_read_b128 v[28:31], v2 offset:{L_F+16}")
        for w in range(8):
            e(f"ds_read_b128 v[{104+4*w}:{107+4*w}], v3 offset:{L_OBUF + 2048*w}")
        for w in range(8):
            e(f"s_waitcnt lgkmcnt({7-w})")
            f = 24 + (w & ~1); sel = w & 1
            for hh in range(2):
                a = 104 + 4 * w + 2 * hh
                if w == 0:
                    e(f"v_pk_mul_f32 v[{16+2*hh}:{17+2*hh}], v[{a}:{a+1}], v[{f}:{f+1}] op_sel:[0,{sel}] op_sel_hi:[1,{sel}]")
                else:
                    e(f"v_pk_fma_f32 v[{16+2*hh}:{17+2*hh}], v[{a}:{a+1}], v[{f}:{f+1}], v[{16+2*hh}:{17+2*hh}] op_sel:[0,{sel},0] op_sel_hi:[1,{sel},1]")
        e("v_min_u32 v16, -2, v16\nv_min_u32 v17, -2, v17\nv_min_u32 v18, -2, v18\nv_min_u32 v19, -2, v19")
        e("buffer_store_dwordx4 v[16:19], v3, s[48:51], s55 offen\nbuffer_store_dwordx4 v[16:19], v3, s[48:51], s54 offen sc1\ns_mov_b64 exec, -1")
        e("L_nored:")
        e("s_cmp_eq_u32 s33, 7\ns_cbranch_scc1 L_t7")
        for m in range(8):
            e(f"ds_read_b64_tr_b16 v[{72+4*m}:{73+4*m}], v6 offset:{4096*m}\nds_read_b64_tr_b16 v[{74+4*m}:{75+4*m}], v6 offset:{4096*m+512}")
        l = s.spin_open("h1", o["sl1"], o["first1"])
        e("buffer_load_dwordx4 v[16:19], v14, s[48:51], s56 offen sc1\nbuffer_load_dwordx4 v[20:23], v14, s[48:51], s56 offen offset:2048 sc1")
        e(f"s_waitcnt vmcnt(1)\nds_read_b64 v[26:27], v36 offset:{L_W}")
        e("v_max3_u32 v24, v16, v17, v18\ns_waitcnt vmcnt(0)\nv_max3_u32 v25, v19, v20, v21\nv_max3_u32 v24, v24, v22, v23")
        e("s_waitcnt lgkmcnt(0)\nv_max3_u32 v25, v25, v26, v27\nv_max_u32 v24, v24, v25\nv_cmp_eq_u32 vcc, -1, v24")
        s.spin_close(l)
        e("v_pk_mul_f32 v[16:17], v[16:17], v[26:27] op_sel_hi:[1,0]\nv_pk_mul_f32 v[18:19], v[18:19], v[26:27] op_sel_hi:[1,0]")
        e("v_pk_fma_f32 v[16:17], v[20:21], v[26:27], v[16:17] op_sel:[0,1,0] op_sel_hi:[1,1,1]\nv_pk_fma_f32 v[18:19], v[22:23], v[26:27], v[18:19] op_sel:[0,1,0] op_sel_hi:[1,1,1]")
        s.rscatter(16)
        s.stamp(10)
        e(f"v_cvt_pk_bf16_f32 v16, v16, v16\nds_write_b16 v15, v16 offset:{L_OBF}\ns_waitcnt lgkmcnt(0)\ns_barrier")
        s.stamp(11)
        for m in range(8):
            e(f"ds_read_b128 v[{40+4*m}:{43+4*m}], v32 offset:{L_OBF + 64*m}")
        for m in range(8):
            e(f"s_waitcnt lgkmcnt({7-m})\nv_mfma_f32_16x16x32_bf16 v[16:19], v[{72+4*m}:{75+4*m}], v[{40+4*m}:{43+4*m}], {'0' if m == 0 else 'v[16:19]'}")
        e("s_mov_b32 exec_lo, 0x00010001\ns_mov_b32 exec_hi, 0x00010001\ns_nop 5")
        e("v_min_u32 v16, -2, v16\nv_min_u32 v17, -2, v17\nv_min_u32 v18, -2, v18\nv_min_u32 v19, -2, v19")
        e("buffer_store_dwordx4 v[16:19], v35, s[48:51], s57 offen sc1")
        s.stamp(12)
        if o["stamps"]:
            e("s_cmp_eq_u32 s30, 7\ns_cbranch_scc1 L_st7\ns_cmp_lg_u32 s30, 0\ns_cbranch_scc1 L_end")
            e("s_mov_b64 s[90:91], s[88:89]\ns_mov_b64 s[92:93], s[88:89]\ns_mov_b64 s[94:95], s[88:89]") if False else None
            s.write_stamps([0, 9, 10, 11, 12])
            e("s_endpgm\nL_st7:")
            s.write_stamps([8])
        e("s_endpgm")
        e("L_t7:\ns_cmp_eq_u32 s3, 0")
        if o["stamps"]:
            e("s_cbranch_scc0 L_fin\ns_cmp_eq_u32 s30, 7\ns_cbranch_scc1 L_st7\ns_cmp_lg_u32 s30, 0\ns_cbranch_scc1 L_end")
            s.write_stamps([0, 9])
            e("s_endpgm\nL_fin:")
        else:
            e("s_cbranch_scc1 L_end")
        e("s_cmp_eq_u32 s30, 7\ns_cbranch_scc1 " + ("L_st7" if o["stamps"] else "L_end"))
        W1, B1, W2, KK = 40, 68, 96, 124
        e(f"s_lshl_b32 s53, s30, 6\nv_lshl_add_u32 v33, v5, 2, v8\nv_add_u32 v33, s53, v33\nv_lshlrev_b32 v35, 1, v33\nv_lshlrev_b32 v33, 2, v33\nds_read_u16 v34, v35 offset:{L_XROW}")
        e(f"v_mov_b32 v3, 0\nds_read_b32 v37, v3 offset:{L_B2}\nds_read_b32 v38, v3 offset:{L_NONCE}")
        e(f"v_lshl_add_u32 v14, v4, 11, v7\ns_lshl_b32 s52, s32, 15\ns_lshl_b32 s53, s30, 8\ns_add_u32 s52, s52, s53\ns_add_u32 s44, s52, {W_OUT}\ns_add_u32 s45, s44, 8192\ns_add_u32 s46, s44, 16384\ns_add_u32 s47, s44, 24576")
        s.srd(36, 24, 3584)
        e(f"s_mul_i32 s58, s32, 896\nv_lshlrev_b32 v2, 2, v1\ns_mov_b32 s61, {fbits(1.0/448)}\ns_mov_b32 s62, {fbits(1e-5)}")
        s.load_params(W1, B1, W2, 9, 128)
        e(f"v_lshlrev_b32 v34, 16, v34\nv_mov_b32 v{KK}, {fbits(K1)}\nv_mov_b32 v{KK+1}, {fbits(K0)}")
        l = s.spin_open("h2", o["sl2"], o["first2"])
        for i in range(4):
            e(f"buffer_load_dwordx4 v[{16+4*i}:{19+4*i}], v14, s[48:51], s{44+i} offen sc1")
        e("s_waitcnt vmcnt(2)\nv_max3_u32 v10, v16, v17, v18\nv_max3_u32 v11, v19, v20, v21\nv_max3_u32 v10, v10, v22, v23\ns_waitcnt vmcnt(0)")
        e("v_max3_u32 v11, v11, v24, v25\nv_max3_u32 v10, v10, v26, v27\nv_max3_u32 v11, v11, v28, v29\nv_max3_u32 v10, v10, v30, v31\nv_max_u32 v10, v10, v11\nv_cmp_eq_u32 vcc, -1, v10")
        s.spin_close(l)
        e("v_pk_add_f32 v[16:17], v[16:17], v[20:21]\nv_pk_add_f32 v[18:19], v[18:19], v[22:23]\nv_pk_add_f32 v[24:25], v[24:25], v[28:29]\nv_pk_add_f32 v[26:27], v[26:27], v[30:31]")
        e("v_pk_add_f32 v[16:17], v[16:17], v[24:25]\nv_pk_add_f32 v[18:19], v[18:19], v[26:27]")
        s.rscatter(16)
        s.stamp(13)
        s.bfround(16)
        e("v_add_f32 v16, v16, v34"); s.bfround(16)
        e(f"ds_write_b32 v33, v16 offset:{L_H}\ns_waitcnt lgkmcnt(0)\ns_barrier")
        e(f"ds_read_b32 v31, v3 offset:{L_H}")
        for i in range(3):
            e(f"ds_read2st64_b32 v[{24+2*i}:{25+2*i}], v2 offset0:{L_H//256 + 2*i} offset1:{L_H//256 + 2*i+1}")
        e(f"ds_read_b32 v30, v2 offset:{L_H + 6*256}\ns_waitcnt lgkmcnt(0)")
        for i in range(7): e(f"v_sub_f32 v{24+i}, v{24+i}, v31")
        e("v_add_f32 v6, v24, v25\nv_mul_f32 v7, v24, v24\nv_add_f32 v8, v26, v27\nv_mul_f32 v9, v25, v25\nv_add_f32 v6, v6, v28\nv_fmac_f32 v7, v26, v26\nv_add_f32 v8, v8, v29\nv_fmac_f32 v9, v27, v27")
        e("v_add_f32 v6, v6, v30\nv_fmac_f32 v7, v28, v28\nv_fmac_f32 v9, v29, v29\nv_add_f32 v6, v6, v8\nv_fmac_f32 v7, v30, v30\nv_add_f32 v7, v7, v9")
        s.red16("v_add_f32", [6, 7])
        for sw in ("v_permlane16_swap_b32", "v_permlane32_swap_b32"):
            e(f"v_mov_b32 v8, v6\nv_mov_b32 v9, v7\ns_nop 0\n{sw} v6, v8\n{sw} v7, v9\nv_add_f32 v6, v6, v8\nv_add_f32 v7, v7, v9")
        e("v_mul_f32 v6, s61, v6\nv_mul_f32 v7, s61, v7\nv_fma_f32 v7, -v6, v6, v7\nv_add_f32 v6, v31, v6\nv_max_f32 v7, 0, v7")
        e("v_cvt_pk_bf16_f32 v8, v6, v7\nv_and_b32 v9, 0xffff0000, v8\nv_lshlrev_b32 v8, 16, v8")
        e("v_add_f32 v9, s62, v9\nv_sub_f32 v17, v16, v8"); s.bfround(9)
        e("v_sqrt_f32 v9, v9\nv_sub_f32 v6, v6, v8\nv_cvt_pk_bf16_f32 v17, v17, v17"); s.bfround(9)
        e("v_rcp_f32 v10, v9\nv_and_b32 v17, 0xffff0000, v17")
        e("v_mul_f32 v6, v6, v10\nv_mul_f32 v7, v7, v10\nv_mul_f32 v17, v17, v10\nv_mul_f32 v7, v7, v10")
        e("v_cvt_pk_bf16_f32 v17, v17, v17\nv_cvt_pk_bf16_f32 v12, v6, v7\nv_and_b32 v17, 0xffff0000, v17\nv_and_b32 v13, 0xffff0000, v12\nv_lshlrev_b32 v12, 16, v12")
        e("v_add_f32 v13, s62, v13\nv_sub_f32 v17, v17, v12"); s.bfround(13)
        e("v_sqrt_f32 v13, v13\nv_cvt_pk_bf16_f32 v17, v17, v17"); s.bfround(13)
        e("v_rcp_f32 v10, v13\nv_and_b32 v17, 0xffff0000, v17\nv_mul_f32 v17, v17, v10\nv_cvt_pk_bf16_f32 v17, v17, v17")
        e(f"v_and_b32 v18, 0x7fff, v17\nv_subrev_u32 v18, {E0*128}, v18\nv_bfe_u32 v19, v17, 15, 1\nv_cmp_le_u32 vcc, {NHALF if not o['force_fb'] else 1800}, v18\nv_min_u32 v18, {NHALF-1}, v18")
        e(f"v_mul_u32_u24 v19, {NHALF}, v19\nv_add_lshl_u32 v18, v18, v19, 1\nds_read_u16 v20, v18 offset:{L_LUT}\ns_mov_b64 s[40:41], vcc")
        s.stamp(14)
        e("s_waitcnt lgkmcnt(0)\nv_lshlrev_b32 v20, 16, v20\ns_cbranch_vccnz L_fb\nL_fb_done:")
        e("v_add_f32 v20, v20, v16\nv_cvt_pk_bf16_f32 v20, v20, v20\nbuffer_store_short v20, v35, s[36:39], s58 offen")
        e(f"s_add_u32 s53, s32, s30\ns_cmp_lg_u32 s53, 0\ns_cbranch_scc1 L_noep\ns_mov_b64 exec, 1\nbuffer_store_dword v38, v3, s[48:51], 0 offen offset:{W_E} sc1\nL_noep:")
        s.stamp(15)
        if o["stamps"]:
            e("s_cmp_lg_u32 s30, 0\ns_cbranch_scc1 L_end")
            s.write_stamps([0, 9, 13, 14, 15])
        e("s_endpgm")
        e("L_fb:\nv_and_b32 v17, 0xffff0000, v17\nL_fb_loop:\ns_ff1_i32_b64 s53, s[40:41]\ns_bitset0_b64 s[40:41], s53\nv_readlane_b32 s54, v17, s53\nv_mov_b32 v22, 0\nv_mov_b32 v23, 0\nv_mov_b32 v24, s54")
        for i0 in range(0, 14, 7):
            items = [(i0 + d, 128 + 4 * d) for d in range(7)]
            for i, t in items: e(f"v_pk_fma_f32 v[{t}:{t+1}], v[24:25], v[{W1+2*i}:{W1+2*i+1}], v[{B1+2*i}:{B1+2*i+1}] op_sel_hi:[0,1,1]")
            for i, t in items: e(f"v_pk_mul_f32 v[{t+2}:{t+3}], v[{t}:{t+1}], v[{t}:{t+1}]")
            for i, t in items: e(f"v_pk_fma_f32 v[{t+2}:{t+3}], v[{t+2}:{t+3}], v[{KK}:{KK+1}], v[{KK}:{KK+1}] op_sel:[0,0,1] op_sel_hi:[1,0,1]")
            for i, t in items: e(f"v_pk_mul_f32 v[{t+2}:{t+3}], v[{t+2}:{t+3}], v[{t}:{t+1}]")
            for i, t in items: e(f"v_exp_f32 v{t+2}, v{t+2}\nv_exp_f32 v{t+3}, v{t+3}")
            for i, t in items: e(f"v_pk_mul_f32 v[{t}:{t+1}], v[{t}:{t+1}], v[{W2+2*i}:{W2+2*i+1}]")
            for i, t in items: e(f"v_pk_add_f32 v[{t+2}:{t+3}], v[{t+2}:{t+3}], 1.0 op_sel_hi:[1,0]")
            for i, t in items: e(f"v_rcp_f32 v{t+2}, v{t+2}\nv_rcp_f32 v{t+3}, v{t+3}")
            for i, t in items: e(f"v_pk_fma_f32 v[22:23], v[{t}:{t+1}], v[{t+2}:{t+3}], v[22:23]")
        e("v_add_f32 v22, v22, v23")
        s.red16("v_add_f32", [22])
        s.xrow("v_add_f32", 22, 23)
        s.bfround(22)
        e("v_add_f32 v22, v22, v37"); s.bfround(22)
        e("s_nop 0\nv_readfirstlane_b32 s54, v22\ns_mov_b32 m0, s53\ns_nop 3\nv_writelane_b32 v20, s54, m0")
        e("s_cmp_lg_u64 s[40:41], 0\ns_cbranch_scc1 L_fb_loop\ns_branch L_fb_done")

def main():
    import json
    out = sys.argv[1]
    opts = json.loads(sys.argv[2]) if len(sys.argv) > 2 else {}
    open(out, "w").write(G(**opts).gen())
if __name__ == "__main__":
    main()
```
